```python
import torch

def _softmax(x, axis=-1):
    return torch.softmax(x, dim=axis)
def _gelu(x):
    return torch.nn.functional.gelu(x, approximate="tanh")
def _silu(x):
    return torch.nn.functional.silu(x)
def _sigmoid(x):
    return torch.sigmoid(x)
def _layernorm(x, axis=-1, eps=1e-5):
    m = x.mean(dim=axis, keepdim=True)
    v = x.var(dim=axis, keepdim=True, unbiased=False)
    return (x - m) / torch.sqrt(v + eps)
def _scatter_add(tgt, idx, src, axis=0):
    return tgt.clone().index_add_(axis, idx, src)
def _segment_sum(src, seg, n):
    out = torch.zeros((n,) + src.shape[1:], dtype=src.dtype)
    return out.index_add_(0, seg, src)
def _pad(x, pw):
    flat = tuple(v for pair in reversed(pw) for v in pair)
    return torch.nn.functional.pad(x, flat)

kernel_name = 'sequential_preLN__grouped_kv_mqa__glu_gated_geglu__prompt'

def setup_inputs():

    _w = (lambda a: (lambda t: t.to(torch.bfloat16) if t.is_floating_point() else t)(torch.as_tensor(a)))
    def _A_setup():
        B, S, D, H = 1, 2048, 512, 32
        Dh = D // H
        return {
            "x": _w((lambda *s: torch.randn(*s, dtype=torch.bfloat16) * 0.05)(B, S, D)),
            "wq": _w((lambda *s: torch.randn(*s, dtype=torch.bfloat16) * 0.05)(D, H * Dh)),
            "wk": _w((lambda *s: torch.randn(*s, dtype=torch.bfloat16) * 0.05)(D, Dh)),
            "wv": _w((lambda *s: torch.randn(*s, dtype=torch.bfloat16) * 0.05)(D, Dh)),
            "wo": _w((lambda *s: torch.randn(*s, dtype=torch.bfloat16) * 0.05)(H * Dh, D)),
        }
    _A_in = _A_setup()

    def _B_setup():
        B, S, Dm, Df = 1, 2048, 512, 1792
        return {
            "x": _w((lambda *s: torch.randn(*s, dtype=torch.bfloat16) * 0.05)(B, S, Dm)),
            "w_gate": _w((lambda *s: torch.randn(*s, dtype=torch.bfloat16) * 0.4)(Dm, Df) * (Dm ** -0.5)),
            "w_up": _w((lambda *s: torch.randn(*s, dtype=torch.bfloat16) * 0.4)(Dm, Df) * (Dm ** -0.5)),
            "w_down": _w((lambda *s: torch.randn(*s, dtype=torch.bfloat16) * 0.4)(Df, Dm) * (Df ** -0.5)),
        }
    _B_in = _B_setup()

    return {
        "A_x": _A_in["x"],
        "A_wq": _A_in["wq"],
        "A_wk": _A_in["wk"],
        "A_wv": _A_in["wv"],
        "A_wo": _A_in["wo"],
        "B_x": _B_in["x"],
        "B_w_gate": _B_in["w_gate"],
        "B_w_up": _B_in["w_up"],
        "B_w_down": _B_in["w_down"],
    }

def reference(A_x, A_wq, A_wk, A_wv, A_wo, B_x, B_w_gate, B_w_up, B_w_down):
    def _A_ref(x, wq, wk, wv, wo):
        B, S, D = x.shape
        H = 32
        Dh = D // H
        q = (lambda x, *d: x.permute(*d))((x @ wq).reshape(B, S, H, Dh), 0, 2, 1, 3)
        k = x @ wk
        v = x @ wv
        scores = torch.einsum("bhqd,bkd->bhqk", q, k) * (Dh ** -0.5)
        p = _softmax(scores, axis=-1)
        o = torch.einsum("bhqk,bkd->bhqd", p, v)
        return (lambda x, *d: x.permute(*d))(o, 0, 2, 1, 3).reshape(B, S, H * Dh) @ wo

    def _B_ref(x, w_gate, w_up, w_down):
        g = torch.einsum("bsd,df->bsf", x, w_gate)
        u = torch.einsum("bsd,df->bsf", x, w_up)
        h = _gelu(g) * u
        return torch.einsum("bsf,fd->bsd", h, w_down)

    x = A_x
    h = x + _A_ref(_layernorm(x, axis=-1), A_wq, A_wk, A_wv, A_wo)
    h2 = h + _B_ref(_layernorm(h, axis=-1), B_w_gate, B_w_up, B_w_down)
    return h2
```

```python
import sys
NAME = "sequential_preLN__grouped_kv_mqa__glu_gated_geglu__prompt"
WS_Q, WS_K, WS_VT, WS_KN, WS_CS, WS_ST, WS_O, WS_H, WS_ACT = 0, 0x200000, 0x210000, 0x220000, 0x221000, 0x230000, 0x300000, 0x500000, 0x800000
WS_SIZE = 268435456

class Kern:
    def __init__(self, name, grid, block, lds, nvgpr, nsgpr=100):
        self.name, self.grid, self.block, self.lds, self.nvgpr, self.nsgpr = name, grid, block, lds, nvgpr, nsgpr
        self.L = []
    def __call__(self, s):
        for line in s.split("\n"):
            line = line.strip()
            if line: self.L.append("    " + line)
    def label(self, s): self.L.append(s + ":")
    def text(self):
        return f".globl {self.name}\n.p2align 8\n.type {self.name},@function\n{self.name}:\n" + "\n".join(self.L) + "\n"
    def desc(self):
        nv = (self.nvgpr + 3) // 4 * 4
        return f""".p2align 6
.amdhsa_kernel {self.name}
  .amdhsa_next_free_vgpr {nv}
  .amdhsa_next_free_sgpr {self.nsgpr}
  .amdhsa_accum_offset {nv}
  .amdhsa_group_segment_fixed_size 0
  .amdhsa_kernarg_size 96
  .amdhsa_user_sgpr_count 2
  .amdhsa_user_sgpr_kernarg_segment_ptr 1
  .amdhsa_system_sgpr_workgroup_id_x 1
.end_amdhsa_kernel
"""
STAMP = False
def stamp(k, i):
    if STAMP: k(f"s_memtime s[{60+2*i}:{61+2*i}]")
def stamp_out(k, n, wsrd, nwaves, base=0x1000000):
    if not STAMP: return
    k("s_waitcnt vmcnt(0) lgkmcnt(0)")
    k(f"s_memtime s[{60+2*n}:{61+2*n}]\ns_waitcnt lgkmcnt(0)")
    k(f"s_mul_i32 s58, s2, {nwaves}\ns_add_u32 s58, s58, s20\ns_lshl_b32 s58, s58, 6\ns_add_u32 s58, s58, {base}\nv_mov_b32 v1, 0")
    for i in range(1, n+1):
        k(f"s_sub_u32 s59, s{60+2*i}, s60\nv_mov_b32 v2, s59\nbuffer_store_dword v2, v1, {wsrd}, s58 offen offset:{4*(i-1)}")
def vr(b, n): return f"v[{b}:{b+n-1}]"

def srd(k, d, ptr_s, size):
    k(f"s_mov_b32 s{d}, s{ptr_s}\ns_mov_b32 s{d+1}, s{ptr_s+1}\ns_mov_b32 s{d+2}, {size}\ns_mov_b32 s{d+3}, 0x00020000")

def gen_attn():
    VBASE = 65536; VRS = 4112; CBASE = VBASE + 17 * VRS
    CBASE = (CBASE + 15) // 16 * 16
    LDS = CBASE + 4 * 4608 + 64
    k = Kern("attn_kernel", (256, 1, 1), (512, 1, 1), LDS, 160)
    QA, QB = 8, 12; KF = [16, 20]; VF = [24, 32]; PA, PB = 40, 48
    CA, CB = 64, 80; SA, SB = 96, 112; OA, OB = 128, 144
    vL16, vK, vV = 1, 2, 3
    k(f"""
    s_cmp_ge_u32 s2, 256
    s_cbranch_scc1 L_attn_end
    s_load_dwordx2 s[4:5], s[0:1], 88
    v_and_b32 v4, 63, v0
    v_lshrrev_b32 v5, 6, v0
    v_lshlrev_b32 v{vL16}, 4, v4
    v_readfirstlane_b32 s20, v5
    v_and_b32 v6, 31, v0
    v_lshlrev_b32 v6, 5, v6
    v_bfe_u32 v7, v0, 5, 1
    v_lshl_or_b32 v6, v7, 4, v6       ; (l&31)*32 + h*16
    v_lshlrev_b32 v57, 2, v4
    s_waitcnt lgkmcnt(0)
    """)
    srd(k, 8, 4, WS_SIZE)
    k(f"""
    s_and_b32 s21, s20, 3
    s_lshr_b32 s22, s20, 2
    s_lshl_b32 s24, s2, 13
    s_lshl_b32 s23, s21, 11
    s_add_u32 s24, s24, s23
    s_mov_b32 s25, {WS_KN}
    buffer_load_dwordx4 {vr(QA,4)}, v6, s[8:11], s24 offen
    buffer_load_dwordx4 {vr(QB,4)}, v6, s[8:11], s24 offen offset:1024
    buffer_load_dword v56, v57, s[8:11], s25 offen
    s_lshl_b32 s25, s20, 13           ; w*8192
    """)
    for j in range(8):
        k(f"""
        s_add_u32 s26, s25, {j*1024}
        s_mov_b32 m0, s26
        s_add_u32 s27, s26, {WS_K}
        buffer_load_dwordx4 v{vL16}, s[8:11], s27 offen lds
        """)
    k(f"s_mul_i32 s28, s20, {2*VRS}\ns_lshl_b32 s29, s20, 13")
    for d in range(2):
        for c in range(4):
            k(f"""
            s_add_u32 s26, s28, {VBASE + d*VRS + c*1024}
            s_mov_b32 m0, s26
            s_add_u32 s27, s29, {WS_VT + d*4096 + c*1024}
            buffer_load_dwordx4 v{vL16}, s[8:11], s27 offen lds
            """)
    k(f"""
    v_and_b32 v5, 255, v0
    v_lshlrev_b32 v5, 4, v5
    v_mov_b32 v60, 0x3f803f80
    v_mov_b32 v61, 0x3f803f80
    v_mov_b32 v62, 0x3f803f80
    v_mov_b32 v63, 0x3f803f80
    ds_write_b128 v5, v[60:63] offset:{VBASE + 16*VRS - 65536}
    """.replace(f"offset:{VBASE + 16*VRS - 65536}", f"offset:{0}"))
    k.L.pop()
    k(f"v_add_u32 v5, {VBASE + 16*VRS}, v5\nds_write_b128 v5, v[60:63]")
    k(f"""
    s_lshl_b32 s26, s22, 15
    v_add_u32 v{vK}, s26, v{vL16}
    v_and_b32 v5, 31, v0
    v_min_u32 v5, 16, v5
    s_movk_i32 s27, {VRS}
    v_mul_lo_u32 v5, v5, s27
    v_lshl_add_u32 v5, v7, 4, v5
    s_lshl_b32 s26, s22, 11
    s_add_u32 s26, s26, {VBASE}
    v_add_u32 v{vV}, s26, v5
    """)
    for i in range(16): k(f"v_mov_b32 v{OA+i}, 0\nv_mov_b32 v{OB+i}, 0")
    k("s_waitcnt vmcnt(16)")
    k(f"""
    v_max_f32_dpp v56, v56, v56 quad_perm:[1,0,3,2] row_mask:0xf bank_mask:0xf
    v_mov_b32 v4, 0
    v_mov_b32 v5, 0
    v_max_f32_dpp v56, v56, v56 quad_perm:[2,3,0,1] row_mask:0xf bank_mask:0xf
    v_dot2_f32_bf16 v4, v{QA}, v{QA}, v4
    v_dot2_f32_bf16 v5, v{QB}, v{QB}, v5
    v_max_f32_dpp v56, v56, v56 row_ror:4 row_mask:0xf bank_mask:0xf
    v_dot2_f32_bf16 v4, v{QA+1}, v{QA+1}, v4
    v_dot2_f32_bf16 v5, v{QB+1}, v{QB+1}, v5
    v_max_f32_dpp v56, v56, v56 row_ror:8 row_mask:0xf bank_mask:0xf
    v_dot2_f32_bf16 v4, v{QA+2}, v{QA+2}, v4
    v_dot2_f32_bf16 v5, v{QB+2}, v{QB+2}, v5
    v_mov_b32 v57, v56
    v_dot2_f32_bf16 v4, v{QA+3}, v{QA+3}, v4
    v_dot2_f32_bf16 v5, v{QB+3}, v{QB+3}, v5
    s_nop 1
    v_permlane16_swap_b32 v56, v57
    s_nop 1
    v_max_f32 v56, v56, v57
    v_mov_b32 v58, v4
    v_mov_b32 v57, v56
    v_mov_b32 v59, v5
    s_nop 1
    v_permlane32_swap_b32 v56, v57
    v_permlane32_swap_b32 v4, v58
    v_permlane32_swap_b32 v5, v59
    s_nop 1
    v_max_f32 v56, v56, v57
    v_add_f32 v4, v4, v58
    v_add_f32 v5, v5, v59
    v_mul_f32 v4, v4, v56
    v_mul_f32 v5, v5, v56
    v_sqrt_f32 v4, v4
    v_sqrt_f32 v5, v5
    s_nop 0
    """)
    for i in range(16): k(f"v_sub_f32 v{CA+i}, 0, v4\nv_sub_f32 v{CB+i}, 0, v5")
    k("s_waitcnt vmcnt(0) lgkmcnt(0)\ns_barrier")
    k(f"""
    ds_read_b128 {vr(KF[0],4)}, v{vK}
    ds_read_b128 {vr(KF[1],4)}, v{vK} offset:1024
    ds_read_b128 {vr(VF[0],4)}, v{vV}
    ds_read_b128 {vr(VF[0]+4,4)}, v{vV} offset:32
    s_waitcnt lgkmcnt(3)
    v_mfma_f32_32x32x16_bf16 {vr(SA,16)}, {vr(KF[0],4)}, {vr(QA,4)}, {vr(CA,16)}
    v_mfma_f32_32x32x16_bf16 {vr(SB,16)}, {vr(KF[0],4)}, {vr(QB,4)}, {vr(CB,16)}
    s_mov_b32 s30, 16
    s_nop 7
    """)
    def unit(S, P, O, Q, C, kf, vf):
        for i in range(8): k(f"v_exp_f32 v{S+i}, v{S+i}")
        for i in range(4): k(f"v_cvt_pk_bf16_f32 v{P+i}, v{S+2*i}, v{S+2*i+1}")
        for i in range(8, 16):
            k(f"v_exp_f32 v{S+i}, v{S+i}")
            if i == 9: k(f"v_mfma_f32_32x32x16_bf16 {vr(O,16)}, {vr(vf,4)}, {vr(P,4)}, {vr(O,16)}")
        for i in range(4, 8): k(f"v_cvt_pk_bf16_f32 v{P+i}, v{S+2*i}, v{S+2*i+1}")
        k(f"v_mfma_f32_32x32x16_bf16 {vr(S,16)}, {vr(kf,4)}, {vr(Q,4)}, {vr(C,16)}")
        k("s_nop 0")
        k(f"v_mfma_f32_32x32x16_bf16 {vr(O,16)}, {vr(vf+4,4)}, {vr(P+4,4)}, {vr(O,16)}")
    k.label("L_attn_loop")
    for par in range(2):
        k(f"""
        s_waitcnt lgkmcnt(0)
        ds_read_b128 {vr(KF[par],4)}, v{vK} offset:{(2+par)*1024}
        ds_read_b128 {vr(VF[1-par],4)}, v{vV} offset:{(1+par)*64}
        ds_read_b128 {vr(VF[1-par]+4,4)}, v{vV} offset:{(1+par)*64+32}
        """)
        unit(SA, PA, OA, QA, CA, KF[1-par], VF[par])
        unit(SB, PB, OB, QB, CB, KF[1-par], VF[par])
    k(f"""
    v_add_u32 v{vK}, 2048, v{vK}
    v_add_u32 v{vV}, 128, v{vV}
    s_sub_u32 s30, s30, 1
    s_cmp_lg_u32 s30, 0
    s_cbranch_scc1 L_attn_loop
    s_waitcnt lgkmcnt(0)
    s_nop 15
    s_mul_i32 s26, s21, 4608
    s_add_u32 s26, s26, {CBASE}
    v_add_u32 v5, s26, v{vL16}
    v_lshrrev_b32 v4, 2, v{vL16}
    v_add_u32 v4, s26, v4
    s_cmp_eq_u32 s22, 0
    s_cbranch_scc1 L_attn_lo
    ds_write_b128 v5, {vr(OA,4)}
    ds_write_b128 v5, {vr(OA+4,4)} offset:1024
    ds_write_b32 v4, v{OA+8} offset:2048
    ds_write_b128 v5, {vr(OB,4)} offset:2304
    ds_write_b128 v5, {vr(OB+4,4)} offset:3328
    ds_write_b32 v4, v{OB+8} offset:4352
    s_waitcnt lgkmcnt(0)
    s_barrier
    s_branch L_attn_end
    """)
    k.label("L_attn_lo")
    k(f"""
    s_barrier
    ds_read_b128 {vr(SA,4)}, v5
    ds_read_b128 {vr(SA+4,4)}, v5 offset:1024
    ds_read_b32 v{SA+8}, v4 offset:2048
    ds_read_b128 {vr(SB,4)}, v5 offset:2304
    ds_read_b128 {vr(SB+4,4)}, v5 offset:3328
    ds_read_b32 v{SB+8}, v4 offset:4352
    s_waitcnt lgkmcnt(0)
    """)
    for i in range(9): k(f"v_add_f32 v{OA+i}, v{OA+i}, v{SA+i}\nv_add_f32 v{OB+i}, v{OB+i}, v{SB+i}")
    k(f"""
    v_mov_b32 v58, v{OA+8}
    v_mov_b32 v59, v{OB+8}
    s_nop 1
    v_permlane32_swap_b32 v{OA+8}, v58
    v_permlane32_swap_b32 v{OB+8}, v59
    s_nop 1
    v_rcp_f32 v58, v{OA+8}
    v_rcp_f32 v59, v{OB+8}
    s_nop 0
    """)
    for i in range(8): k(f"v_mul_f32 v{OA+i}, v{OA+i}, v58\nv_mul_f32 v{OB+i}, v{OB+i}, v59")
    for i in range(4): k(f"v_cvt_pk_bf16_f32 v{PA+i}, v{OA+2*i}, v{OA+2*i+1}\nv_cvt_pk_bf16_f32 v{PB+i}, v{OB+2*i}, v{OB+2*i+1}")
    k(f"""
    v_and_b32 v6, 31, v0
    v_lshlrev_b32 v6, 5, v6
    v_lshl_or_b32 v6, v7, 3, v6       ; row*32 + 8h
    s_add_u32 s24, s24, {WS_O}
    buffer_store_dwordx2 {vr(PA,2)}, v6, s[8:11], s24 offen
    buffer_store_dwordx2 {vr(PA+2,2)}, v6, s[8:11], s24 offen offset:16
    buffer_store_dwordx2 {vr(PB,2)}, v6, s[8:11], s24 offen offset:1024
    buffer_store_dwordx2 {vr(PB+2,2)}, v6, s[8:11], s24 offen offset:1040
    """)
    k.label("L_attn_end")
    k("s_endpgm")
    return k


QSCALE = 0.25 * 1.4426950408889634
def fhex(x):
    import struct
    return "0x%08x" % struct.unpack("<I", struct.pack("<f", x))[0]

def lane_consts(k):
    k("""
    v_and_b32 v4, 63, v0
    v_lshrrev_b32 v6, 6, v0
    v_and_b32 v5, 31, v0
    v_readfirstlane_b32 s20, v6
    v_bfe_u32 v7, v0, 5, 1
    """)

def tr_addr(k, vdst, rw_shift, swz_mode):
    k(f"""
    v_bfe_u32 v10, v0, 2, 2           ; i>>2
    v_lshl_add_u32 v11, v7, 3, v10    ; row = 8h + (i>>2)
    v_lshlrev_b32 v11, {rw_shift}, v11
    v_bfe_u32 v12, v0, 4, 1           ; g&1
    v_bfe_u32 v13, v0, 1, 1           ; (i&3)>>1
    v_lshl_add_u32 v12, v12, 1, v13   ; chunk
    """)
    if swz_mode == 'r128':
        k("v_bfe_u32 v13, v0, 3, 1\nv_lshlrev_b32 v13, 2, v13\nv_xor_b32 v12, v12, v13")
    elif swz_mode == 'r256':
        k("v_lshlrev_b32 v13, 2, v10\nv_xor_b32 v12, v12, v13")
    k(f"""
    v_lshl_add_u32 v11, v12, 4, v11
    v_and_b32 v13, 1, v0
    v_lshl_add_u32 v{vdst}, v13, 3, v11
    """)

def gen_small(kind):
    k1 = kind == 'k1'
    name = "qkv_kernel" if k1 else "wo_kernel"
    NWG = 272 if k1 else 256
    k = Kern(name, (NWG, 1, 1), (256, 1, 1), 65536, 216)
    XF = 64
    ACC, ACC1 = 192, 32
    WF = [16, 20]
    ONES = 24
    vX, vW, vDW = 1, 2, 3
    vSum, vSq = 28, 29
    RES = 48
    L = name
    k(f"s_cmp_ge_u32 s2, {NWG}\ns_cbranch_scc1 L_{L}_end")
    if k1:
        k("s_load_dwordx4 s[4:7], s[0:1], 0\ns_load_dwordx4 s[32:35], s[0:1], 16\ns_load_dwordx2 s[36:37], s[0:1], 88")
    else:
        k("s_load_dwordx2 s[4:5], s[0:1], 0\ns_load_dwordx2 s[6:7], s[0:1], 32\ns_load_dwordx4 s[32:35], s[0:1], 48\ns_load_dwordx2 s[36:37], s[0:1], 88")
    stamp(k, 0)
    lane_consts(k)
    k("s_waitcnt lgkmcnt(0)")
    srd(k, 8, 4, 2097152)
    srd(k, 12, 6, 524288)
    srd(k, 16, 36, WS_SIZE)
    for i in range(16): k(f"v_mov_b32 v{ACC+i}, 0")
    if k1:
        for i in range(16): k(f"v_mov_b32 v{ACC1+i}, 0")
        for i in range(4): k(f"v_mov_b32 v{ONES+i}, 0x3f803f80")
        k(f"v_mov_b32 v{vSum}, 0\nv_mov_b32 v{vSq}, 0")
        k(f"s_cmp_ge_u32 s2, 256\ns_cbranch_scc1 L_{L}_kv")
    k(f"""
    s_lshr_b32 s21, s2, 3
    s_and_b32 s22, s2, 7
    s_and_b32 s23, s20, 1
    s_lshr_b32 s24, s20, 1
    s_lshl_b32 s25, s21, 6
    s_lshl_b32 s26, s23, 5
    s_add_u32 s25, s25, s26
    s_lshl_b32 s26, s25, 10
    s_lshl_b32 s27, s22, 6
    s_lshl_b32 s28, s24, 5
    s_add_u32 s27, s27, s28
    v_lshlrev_b32 v{vX}, 10, v5
    v_lshl_add_u32 v{vX}, v7, 4, v{vX}  ; m*1024 + 16h
    v_lshrrev_b32 v10, 3, v4
    v_and_b32 v11, 7, v4
    v_bfe_u32 v12, v4, 4, 1
    v_lshlrev_b32 v12, 2, v12
    v_xor_b32 v11, v11, v12
    v_lshlrev_b32 v{vDW}, 10, v10
    v_lshl_add_u32 v{vDW}, v11, 4, v{vDW}
    s_lshl_b32 s28, s22, 7
    s_lshl_b32 s29, s20, 13           ; w*8 rows*1024
    s_add_u32 s28, s28, s29
    s_lshl_b32 s29, s20, 10
    """)
    if k1: xs = "s[8:11]"; xoff = "s26"
    else:
        k(f"s_add_u32 s30, s26, {WS_O}")
        xs = "s[16:19]"; xoff = "s30"
    tr_addr(k, vW, 7, 'r128')
    k(f"s_lshl_b32 s31, s24, 6\nv_xor_b32 v{vW}, s31, v{vW}")
    for q in range(4):
        for j in range(4):
            i_rel = 16*q + 4*j
            k(f"""
            s_add_u32 s38, s29, {i_rel*1024}
            s_mov_b32 m0, s38
            s_add_u32 s39, s28, {i_rel*8*1024}
            buffer_load_dwordx4 v{vDW}, s[12:15], s39 offen lds
            """)
        for ks in range(8*q, 8*q+8):
            k(f"buffer_load_dwordx4 {vr(XF+4*ks,4)}, v{vX}, {xs}, {xoff} offen offset:{32*ks}")
    nextra = 0
    if not k1:
        k(f"""
        v_lshlrev_b32 v10, 10, v5
        v_lshl_add_u32 v10, v7, 3, v10
        s_lshl_b32 s38, s27, 1
        s_add_u32 s38, s38, s26
        """)
        for g in range(4): k(f"buffer_load_dwordx2 {vr(RES+2*g,2)}, v10, s[8:11], s38 offen offset:{16*g}")
        nextra = 4
    def mainloop(kv):
        for q in range(4):
            per = (2 if kv else 4) + 8
            if q == 0: stamp(k, 1)
            k(f"s_waitcnt vmcnt({(3-q)*per + nextra})\ns_barrier")
            stamp(k, 2+q)
            rs = 32 if kv else 128
            def rd(ks):
                b = WF[ks % 2]
                k(f"ds_read_b64_tr_b16 {vr(b,2)}, v{vW} offset:{ks*16*rs}")
                k(f"ds_read_b64_tr_b16 {vr(b+2,2)}, v{vW} offset:{ks*16*rs + 4*rs}")
            rd(8*q)
            for ks in range(8*q, 8*q+8):
                if ks + 1 < 8*q+8:
                    rd(ks+1); k("s_waitcnt lgkmcnt(2)")
                else: k("s_waitcnt lgkmcnt(0)")
                b = WF[ks % 2]
                k(f"v_mfma_f32_32x32x16_bf16 {vr(ACC,16)}, {vr(b,4)}, {vr(XF+4*ks,4)}, {vr(ACC,16)}")
                if k1:
                    k(f"v_mfma_f32_32x32x16_bf16 {vr(ACC1,16)}, {vr(b,4)}, {vr(ONES,4)}, {vr(ACC1,16)}")
                    for r in range(4):
                        k(f"v_dot2_f32_bf16 v{vSum}, v{XF+4*ks+r}, v{ONES}, v{vSum}")
                        k(f"v_dot2_f32_bf16 v{vSq}, v{XF+4*ks+r}, v{XF+4*ks+r}, v{vSq}")
        k("s_nop 15")
        stamp(k, 6)
    def ln_stats(scale):
        k(f"""
        v_mov_b32 v30, v{vSum}
        v_mov_b32 v31, v{vSq}
        s_nop 1
        v_permlane32_swap_b32 v{vSum}, v30
        v_permlane32_swap_b32 v{vSq}, v31
        s_nop 1
        v_add_f32 v{vSum}, v{vSum}, v30
        v_add_f32 v{vSq}, v{vSq}, v31
        v_mul_f32 v30, {fhex(-1.0/512)}, v{vSum}
        v_mul_f32 v31, {fhex(1.0/512)}, v{vSq}
        v_fma_f32 v31, -v30, v30, v31
        v_max_f32 v31, 0, v31
        v_add_f32 v31, {fhex(1e-5)}, v31
        v_rsq_f32 v31, v31
        s_nop 0
        v_mul_f32 v31, {fhex(scale)}, v31
        """)
        for r in range(16):
            k(f"v_fma_f32 v{ACC+r}, v30, v{ACC1+r}, v{ACC+r}\nv_mul_f32 v{ACC+r}, v{ACC+r}, v31")
    mainloop(False)
    k(f"""
    v_lshlrev_b32 v10, 10, v5
    v_lshl_add_u32 v10, v7, 3, v10
    s_lshl_b32 s38, s27, 1
    s_add_u32 s38, s38, s26
    """)
    if k1:
        ln_stats(QSCALE)
        for r in range(8): k(f"v_cvt_pk_bf16_f32 v{ACC+r}, v{ACC+2*r}, v{ACC+2*r+1}")
        k(f"s_add_u32 s38, s38, {WS_Q}")
        for g in range(4): k(f"buffer_store_dwordx2 {vr(ACC+2*g,2)}, v10, s[16:19], s38 offen offset:{16*g}")
        stamp_out(k, 7, "s[16:19]", 4)
        k(f"s_branch L_{L}_end")
    else:
        k("s_waitcnt vmcnt(0)")
        for r in range(8):
            k(f"v_lshlrev_b32 v12, 16, v{RES+r}\nv_and_b32 v13, 0xffff0000, v{RES+r}")
            k(f"v_add_f32 v{ACC+2*r}, v{ACC+2*r}, v12\nv_add_f32 v{ACC+2*r+1}, v{ACC+2*r+1}, v13")
        for r in range(8): k(f"v_cvt_pk_bf16_f32 v{ACC+r}, v{ACC+2*r}, v{ACC+2*r+1}")
        k(f"s_add_u32 s38, s38, {WS_H}")
        for g in range(4): k(f"buffer_store_dwordx2 {vr(ACC+2*g,2)}, v10, s[16:19], s38 offen offset:{16*g}")
        k(f"v_mov_b32 v{vSum}, 0\nv_mov_b32 v{vSq}, 0\nv_mov_b32 v{ONES}, 0x3f803f80")
        for r in range(8):
            k(f"v_dot2_f32_bf16 v{vSum}, v{ACC+r}, v{ONES}, v{vSum}\nv_dot2_f32_bf16 v{vSq}, v{ACC+r}, v{ACC+r}, v{vSq}")
        k(f"""
        s_nop 2
        v_mov_b32 v30, v{vSum}
        v_mov_b32 v31, v{vSq}
        s_nop 1
        v_permlane32_swap_b32 v{vSum}, v30
        v_permlane32_swap_b32 v{vSq}, v31
        s_nop 1
        v_add_f32 v{vSum}, v{vSum}, v30
        v_add_f32 v{vSq}, v{vSq}, v31
        v_lshlrev_b32 v10, 7, v5          ; m*128
        s_lshl_b32 s38, s25, 7            ; row0*128
        s_lshr_b32 s39, s27, 2            ; (n0/32)*8
        s_add_u32 s38, s38, s39
        s_add_u32 s38, s38, {WS_ST}
        buffer_store_dwordx2 v[{vSum}:{vSq}], v10, s[16:19], s38 offen
        """)
        stamp_out(k, 7, "s[16:19]", 4)
        srd(k, 40, 32, 1835008); srd(k, 44, 34, 1835008)
        k(f"""
        s_lshl_b32 s38, s2, 2
        s_add_u32 s38, s38, s20           ; W
        s_cmp_ge_u32 s38, 896
        s_cbranch_scc1 L_{L}_end
        s_cmp_ge_u32 s38, 448
        s_cselect_b32 s39, 448, 0
        s_cselect_b32 s48, 1792, 0
        s_cselect_b32 s40, s44, s40
        s_cselect_b32 s41, s45, s41
        s_sub_u32 s38, s38, s39           ; rem
        s_mul_i32 s39, s38, 9363
        s_lshr_b32 s39, s39, 16           ; rc
        s_mul_i32 s49, s39, 7
        s_sub_u32 s49, s38, s49           ; cb
        s_mul_i32 s50, s39, {8*3584}
        s_lshl_b32 s51, s49, 9
        s_add_u32 s50, s50, s51
        v_lshlrev_b32 v10, 3, v4
        """)
        for r in range(8):
            k(f"buffer_load_dwordx2 {vr(XF+2*r,2)}, v10, s[40:43], s50 offen")
            if r < 7: k(f"s_add_u32 s50, s50, 3584")
        k(f"""
        v_mov_b32 v12, 0x00003f80
        v_mov_b32 v13, 0x3f800000
        v_mov_b32 v16, 0
        v_mov_b32 v17, 0
        v_mov_b32 v18, 0
        v_mov_b32 v19, 0
        s_waitcnt vmcnt(0)
        """)
        for r in range(8):
            k(f"""
            v_dot2_f32_bf16 v16, v{XF+2*r}, v12, v16
            v_dot2_f32_bf16 v17, v{XF+2*r}, v13, v17
            v_dot2_f32_bf16 v18, v{XF+2*r+1}, v12, v18
            v_dot2_f32_bf16 v19, v{XF+2*r+1}, v13, v19
            """)
        k(f"""
        s_lshl_b32 s51, s49, 8
        s_add_u32 s51, s51, s48
        s_lshl_b32 s51, s51, 2
        s_add_u32 s51, s51, {WS_CS}
        v_lshlrev_b32 v10, 4, v4
        s_nop 2
        buffer_atomic_add_f32 v16, v10, s[16:19], s51 offen
        buffer_atomic_add_f32 v17, v10, s[16:19], s51 offen offset:4
        buffer_atomic_add_f32 v18, v10, s[16:19], s51 offen offset:8
        buffer_atomic_add_f32 v19, v10, s[16:19], s51 offen offset:12
        """)
    if k1:
        k.label(f"L_{L}_kv")
        srd(k, 40, 32, 16384); srd(k, 44, 34, 16384)
        VOFF = 16384 + 128
        k(f"""
        s_sub_u32 s21, s2, 256
        s_lshl_b32 s25, s21, 7
        s_lshl_b32 s26, s20, 5
        s_add_u32 s25, s25, s26           ; row0
        s_lshl_b32 s26, s25, 10
        v_lshlrev_b32 v{vX}, 10, v5
        v_lshl_add_u32 v{vX}, v7, 4, v{vX}
        v_lshlrev_b32 v{vDW}, 4, v4
        s_lshl_b32 s29, s20, 10
        v_bfe_u32 v10, v0, 2, 2
        v_lshl_add_u32 v11, v7, 3, v10
        v_lshlrev_b32 v11, 5, v11         ; row*32
        v_and_b32 v12, 3, v0
        v_lshl_add_u32 v11, v12, 3, v11   ; + (i&3)*8
        v_bfe_u32 v12, v0, 4, 1
        s_movk_i32 s31, {VOFF}
        v_mad_u32_u24 v{vW}, v12, s31, v11
        """)
        for q in range(4):
            k(f"""
            s_add_u32 s38, s29, {q*4096}
            s_mov_b32 m0, s38
            s_nop 0
            buffer_load_dwordx4 v{vDW}, s[40:43], s38 offen lds
            s_add_u32 s39, s38, {VOFF}
            s_mov_b32 m0, s39
            s_nop 0
            buffer_load_dwordx4 v{vDW}, s[44:47], s38 offen lds
            """)
            for ks in range(8*q, 8*q+8):
                k(f"buffer_load_dwordx4 {vr(XF+4*ks,4)}, v{vX}, s[8:11], s26 offen offset:{32*ks}")
        mainloop(True)
        ln_stats(1.0)
        for r in range(8): k(f"v_cvt_pk_bf16_f32 v{ACC+r}, v{ACC+2*r}, v{ACC+2*r+1}")
        k(f"""
        v_lshlrev_b32 v10, 4, v5
        v_lshl_add_u32 v10, v7, 3, v10
        s_lshl_b32 s38, s25, 5
        s_add_u32 s39, s38, {WS_K}
        buffer_store_dwordx2 {vr(ACC,2)}, v10, s[16:19], s39 offen
        buffer_store_dwordx2 {vr(ACC+2,2)}, v10, s[16:19], s39 offen offset:512
        v_mov_b32 v{vSq}, 0
        """)
        for r in range(4): k(f"v_dot2_f32_bf16 v{vSq}, v{ACC+r}, v{ACC+r}, v{vSq}")
        k(f"""
        v_and_b32 v11, 19, v5             ; 16i + (kk&3)
        v_bfe_u32 v12, v5, 2, 1
        v_lshl_add_u32 v11, v12, 3, v11
        v_bfe_u32 v12, v5, 3, 1
        v_lshl_add_u32 v11, v12, 2, v11   ; pos
        v_lshlrev_b32 v11, 1, v11
        v_lshl_add_u32 v11, v7, 14, v11   ; + 4h*4096
        s_lshl_b32 s38, s25, 1
        s_add_u32 s39, s38, {WS_VT}
        v_mov_b32 v31, v{vSq}
        """)
        for r in range(4):
            d0 = (r & 1) * 2 + (r >> 1) * 8
            k(f"s_add_u32 s38, s39, {d0*4096}")
            k(f"buffer_store_short v{ACC+4+r}, v11, s[16:19], s38 offen")
            k(f"s_add_u32 s38, s39, {(d0+1)*4096}")
            k(f"buffer_store_short_d16_hi v{ACC+4+r}, v11, s[16:19], s38 offen")
        k(f"""
        v_permlane32_swap_b32 v{vSq}, v31
        s_nop 1
        v_add_f32 v{vSq}, v{vSq}, v31
        s_nop 1
        v_max_f32_dpp v{vSq}, v{vSq}, v{vSq} quad_perm:[1,0,3,2] row_mask:0xf bank_mask:0xf
        s_nop 1
        v_max_f32_dpp v{vSq}, v{vSq}, v{vSq} quad_perm:[2,3,0,1] row_mask:0xf bank_mask:0xf
        s_nop 1
        v_max_f32_dpp v{vSq}, v{vSq}, v{vSq} row_ror:4 row_mask:0xf bank_mask:0xf
        s_nop 1
        v_max_f32_dpp v{vSq}, v{vSq}, v{vSq} row_ror:8 row_mask:0xf bank_mask:0xf
        s_nop 1
        v_mov_b32 v31, v{vSq}
        s_nop 1
        v_permlane16_swap_b32 v{vSq}, v31
        s_nop 1
        v_max_f32 v{vSq}, v{vSq}, v31
        s_lshr_b32 s38, s25, 3            ; tile*4
        s_add_u32 s38, s38, {WS_KN}
        v_mov_b32 v10, 0
        buffer_store_dword v{vSq}, v10, s[16:19], s38 offen
        s_cmp_lg_u32 s25, 0
        s_cbranch_scc1 L_{L}_end
        v_mov_b32 v16, 0
        v_mov_b32 v17, 0
        v_mov_b32 v18, 0
        v_mov_b32 v19, 0
        s_mov_b32 s38, {WS_CS}
        """)
        for i in range(14):
            k(f"buffer_store_dwordx4 v[16:19], v{vDW}, s[16:19], s38 offen\ns_add_u32 s38, s38, 1024")
    k.label(f"L_{L}_end")
    k("s_endpgm")
    return k


class G:
    pass

def log2(x):
    r = x.bit_length() - 1
    assert 1 << r == x
    return r

def gemm_setup(k, c):
    NW = c.WM * c.WN
    c.RX = c.KC * 2; c.LX = c.RX // 16; c.RPI = 64 // c.LX
    c.RW = c.BN * 2; c.CW = c.RW // 16; c.RPW = 64 // c.CW
    c.BM = c.WM * c.MT * 32
    c.NXI = c.BM * c.RX // 1024; c.NWI = c.KC * c.RW // 1024
    assert c.NXI % NW == 0 and c.NWI % NW == 0, (c.NXI, c.NWI)
    c.XB = c.BM * c.RX; c.WB = c.KC * c.RW
    c.SB = c.XB + c.NMAT * c.WB
    c.KS = c.KC // 16; c.NST = c.K // c.KC
    c.DPS = (c.NXI + c.NMAT * c.NWI) // NW
    lw = log2(c.WM)
    k(f"s_and_b32 s23, s20, {c.WM-1}\ns_lshr_b32 s24, s20, {lw}")
    llx = log2(c.LX)
    k(f"v_lshrrev_b32 v10, {llx}, v4\nv_and_b32 v11, {c.LX-1}, v4\nv_lshrrev_b32 v12, 4, v4")
    if c.LX == 16:
        k("s_lshl_b32 s25, s20, 2\nv_add_u32 v12, s25, v12\nv_and_b32 v12, 15, v12")
    else:
        assert c.LX == 8
        k("s_lshl_b32 s25, s20, 2\nv_add_u32 v12, s25, v12\nv_and_b32 v12, 7, v12")
    k(f"v_xor_b32 v11, v11, v12\ns_mov_b32 s25, {c.ldx}\nv_mul_lo_u32 v10, v10, s25\nv_lshl_add_u32 v{c.vDX}, v11, 4, v10")
    lcw = log2(c.CW)
    k(f"v_lshrrev_b32 v10, {lcw}, v4\nv_and_b32 v11, {c.CW-1}, v4")
    if c.RW == 128: k("v_bfe_u32 v12, v4, 4, 1\nv_lshlrev_b32 v12, 2, v12\nv_xor_b32 v11, v11, v12")
    elif c.RW == 256: k("v_bfe_u32 v12, v4, 4, 2\nv_lshlrev_b32 v12, 2, v12\nv_xor_b32 v11, v11, v12")
    else: assert False
    k(f"s_mov_b32 s25, {c.ldw}\nv_mul_lo_u32 v10, v10, s25\nv_lshl_add_u32 v{c.vDW}, v11, 4, v10")
    k(f"""
    s_mul_i32 s25, s20, {c.RPI}
    s_add_u32 s25, s25, s21
    s_mul_i32 s26, s25, {c.ldx}
    s_add_u32 s26, s26, {c.xbase}
    s_mul_i32 s27, s20, {c.RPW * c.ldw}
    s_lshl_b32 s25, s22, 1
    s_add_u32 s27, s27, s25
    s_lshl_b32 s28, s20, 10
    """)
    if c.LX == 16: k("v_and_b32 v10, 15, v5")
    else: k("v_bfe_u32 v10, v5, 1, 3")
    k(f"""
    v_xor_b32 v10, v10, v7
    v_lshlrev_b32 v10, 4, v10
    v_lshl_add_u32 v10, v5, {log2(c.RX)}, v10
    s_mul_i32 s25, s23, {c.MT * 32 * c.RX}
    """)
    for ks in range(c.KS):
        k(f"v_xor_b32 v{c.vXb+ks}, {32*ks}, v10\nv_add_u32 v{c.vXb+ks}, s25, v{c.vXb+ks}")
    tr_addr(k, 14, log2(c.RW), 'r128' if c.RW == 128 else 'r256')
    for nt in range(c.NT):
        k(f"s_mul_i32 s25, s24, {c.NT}\ns_add_u32 s25, s25, {nt}\ns_lshl_b32 s25, s25, 6\nv_xor_b32 v{c.vWb+nt}, s25, v14\nv_add_u32 v{c.vWb+nt}, {c.XB}, v{c.vWb+nt}")

def gemm_dma(k, c, st):
    NW = c.WM * c.WN
    slot = (st % c.R) * c.SB
    k0 = st * c.KC
    for j in range(c.NXI // NW):
        k(f"""
        s_add_u32 s38, s28, {slot + j*NW*1024}
        s_mov_b32 m0, s38
        s_add_u32 s39, s26, {j*NW*c.RPI*c.ldx + k0*2}
        buffer_load_dwordx4 v{c.vDX}, {c.xsrd}, s39 offen lds
        """)
    for mat in range(c.NMAT):
        for j in range(c.NWI // NW):
            k(f"""
            s_add_u32 s38, s28, {slot + c.XB + mat*c.WB + j*NW*1024}
            s_mov_b32 m0, s38
            s_add_u32 s39, s27, {(j*NW*c.RPW + k0)*c.ldw}
            buffer_load_dwordx4 v{c.vDW}, {c.wsrd[mat]}, s39 offen lds
            """)

def gemm_main(k, c, extra_hook=None, nextra=0, kstep_hook=None):
    NST, R = c.NST, c.R
    nfr = c.MT + 2 * c.NMAT * c.NT
    issued = 0
    ex = 0
    for st in range(min(R, NST)):
        gemm_dma(k, c, st); issued += 1
    if issued == NST and extra_hook:
        extra_hook(); ex = nextra; extra_hook = None
    stamp(k, 1)
    for st in range(NST):
        k(f"s_waitcnt vmcnt({(issued - st - 1) * c.DPS + ex})\ns_barrier")
        if st < 4: stamp(k, 2 + st)
        if issued < NST and st > 0:
            gemm_dma(k, c, issued); issued += 1
            if issued == NST and extra_hook:
                extra_hook(); ex = nextra; extra_hook = None
        slot = (st % R) * c.SB
        for ks in range(c.KS): k(f"v_add_u32 v{c.vXa+ks}, {slot}, v{c.vXb+ks}")
        for nt in range(c.NT): k(f"v_add_u32 v{c.vWa+nt}, {slot}, v{c.vWb+nt}")
        def rd(ks):
            b = c.FR[ks % 2]
            for mt in range(c.MT):
                k(f"ds_read_b128 {vr(b+4*mt,4)}, v{c.vXa+ks} offset:{mt*32*c.RX}")
            b += 4 * c.MT
            for mat in range(c.NMAT):
                for nt in range(c.NT):
                    for t in range(2):
                        k(f"ds_read_b64_tr_b16 {vr(b+2*t,2)}, v{c.vWa+nt} offset:{mat*c.WB + ks*16*c.RW + t*4*c.RW}")
                    b += 4
        rd(0)
        for ks in range(c.KS):
            if ks + 1 < c.KS:
                rd(ks + 1); k(f"s_waitcnt lgkmcnt({nfr})")
            else: k("s_waitcnt lgkmcnt(0)")
            b = c.FR[ks % 2]
            for mat in range(c.NMAT):
                for nt in range(c.NT):
                    wf = b + 4*c.MT + 4*(mat*c.NT + nt)
                    for mt in range(c.MT):
                        a = c.ACC + 16 * ((mat*c.NT + nt) * c.MT + mt)
                        k(f"v_mfma_f32_32x32x16_bf16 {vr(a,16)}, {vr(wf,4)}, {vr(b+4*mt,4)}, {vr(a,16)}")
            if kstep_hook: kstep_hook(b)
    k("s_nop 15")
    stamp(k, 6)

def half_sum(k, regs, tmps):
    for r, t in zip(regs, tmps): k(f"v_mov_b32 v{t}, v{r}")
    k("s_nop 1")
    for r, t in zip(regs, tmps): k(f"v_permlane32_swap_b32 v{r}, v{t}")
    k("s_nop 1")
    for r, t in zip(regs, tmps): k(f"v_add_f32 v{r}, v{r}, v{t}")

def colsum_part(k, L, XF):
    srd(k, 40, 32, 1835008); srd(k, 44, 34, 1835008)
    k(f"""
    s_lshl_b32 s38, s2, 2
    s_add_u32 s38, s38, s20           ; W
    s_cmp_ge_u32 s38, 896
    s_cbranch_scc1 L_{L}_end
    s_cmp_ge_u32 s38, 448
    s_cselect_b32 s39, 448, 0
    s_cselect_b32 s48, 1792, 0
    s_cselect_b32 s40, s44, s40
    s_cselect_b32 s41, s45, s41
    s_sub_u32 s38, s38, s39           ; rem
    s_mul_i32 s39, s38, 9363
    s_lshr_b32 s39, s39, 16           ; rc
    s_mul_i32 s49, s39, 7
    s_sub_u32 s49, s38, s49           ; cb
    s_mul_i32 s50, s39, {8*3584}
    s_lshl_b32 s51, s49, 9
    s_add_u32 s50, s50, s51
    v_lshlrev_b32 v10, 3, v4
    """)
    for r in range(8):
        k(f"buffer_load_dwordx2 {vr(XF+2*r,2)}, v10, s[40:43], s50 offen")
        if r < 7: k(f"s_add_u32 s50, s50, 3584")
    k(f"""
    v_mov_b32 v12, 0x00003f80
    v_mov_b32 v13, 0x3f800000
    v_mov_b32 v16, 0
    v_mov_b32 v17, 0
    v_mov_b32 v18, 0
    v_mov_b32 v19, 0
    s_waitcnt vmcnt(0)
    """)
    for r in range(8):
        k(f"""
        v_dot2_f32_bf16 v16, v{XF+2*r}, v12, v16
        v_dot2_f32_bf16 v17, v{XF+2*r}, v13, v17
        v_dot2_f32_bf16 v18, v{XF+2*r+1}, v12, v18
        v_dot2_f32_bf16 v19, v{XF+2*r+1}, v13, v19
        """)
    k(f"""
    s_lshl_b32 s51, s49, 8
    s_add_u32 s51, s51, s48
    s_lshl_b32 s51, s51, 2
    s_add_u32 s51, s51, {WS_CS}
    v_lshlrev_b32 v10, 4, v4
    s_nop 2
    buffer_atomic_add_f32 v16, v10, s[16:19], s51 offen
    buffer_atomic_add_f32 v17, v10, s[16:19], s51 offen offset:4
    buffer_atomic_add_f32 v18, v10, s[16:19], s51 offen offset:8
    buffer_atomic_add_f32 v19, v10, s[16:19], s51 offen offset:12
    """)

def cfg64(K, KC, R, ldx, xbase, xsrd, ldw):
    c = G()
    c.WM, c.WN, c.MT, c.NT, c.NMAT, c.BN = 2, 2, 1, 1, 1, 64
    c.K, c.KC, c.R, c.ldx, c.xbase, c.xsrd, c.ldw, c.wsrd = K, KC, R, ldx, xbase, xsrd, ldw, ["s[12:15]"]
    c.vDX, c.vDW = 1, 2
    c.vXb, c.vXa, c.vWb, c.vWa = 16, 24, 32, 33
    c.FR = [36, 44]
    c.ACC = 64
    return c

def gen_res(kind, KC=128, R=4):
    k3 = kind == 'k3'
    name = "wo_kernel" if k3 else "down_kernel"
    L = name
    if k3: c = cfg64(512, KC, R, 1024, WS_O, "s[16:19]", 1024)
    else: c = cfg64(1792, KC, R, 3584, WS_ACT, "s[16:19]", 1024)
    SB = 64 * KC * 2 * 2
    k = Kern(name, (256, 1, 1), (256, 1, 1), SB * R, 112)
    RES = 80; ACC = c.ACC; vSum, vSq, ONES = 8, 9, 15
    k(f"s_cmp_ge_u32 s2, 256\ns_cbranch_scc1 L_{L}_end")
    if k3:
        k("s_load_dwordx2 s[4:5], s[0:1], 0\ns_load_dwordx2 s[6:7], s[0:1], 32\ns_load_dwordx4 s[32:35], s[0:1], 48\ns_load_dwordx2 s[36:37], s[0:1], 88")
    else:
        k("s_load_dwordx4 s[4:7], s[0:1], 64\ns_load_dwordx2 s[36:37], s[0:1], 88")
    stamp(k, 0)
    lane_consts(k)
    k("s_waitcnt lgkmcnt(0)")
    if k3:
        srd(k, 8, 4, 2097152); srd(k, 12, 6, 524288)
    else:
        srd(k, 12, 4, 1835008); srd(k, 8, 6, 2097152)
    srd(k, 16, 36, WS_SIZE)
    k("s_lshr_b32 s21, s2, 3\ns_lshl_b32 s21, s21, 6\ns_and_b32 s22, s2, 7\ns_lshl_b32 s22, s22, 6")
    gemm_setup(k, c)
    for i in range(16): k(f"v_mov_b32 v{ACC+i}, 0")
    k(f"""
    s_lshl_b32 s29, s23, 5
    s_add_u32 s29, s29, s21
    s_lshl_b32 s30, s24, 5
    s_add_u32 s30, s30, s22
    s_lshl_b32 s31, s29, 10
    s_lshl_b32 s25, s30, 1
    s_add_u32 s31, s31, s25
    v_lshlrev_b32 v3, 10, v5
    v_lshl_add_u32 v3, v7, 3, v3
    """)
    def extra():
        if k3:
            for g in range(4): k(f"buffer_load_dwordx2 {vr(RES+2*g,2)}, v3, s[8:11], s31 offen offset:{16*g}")
        else:
            k(f"s_add_u32 s25, s31, {WS_H}")
            for g in range(4): k(f"buffer_load_dwordx2 {vr(RES+2*g,2)}, v3, s[16:19], s25 offen offset:{16*g}")
    gemm_main(k, c, extra, 4)
    k("s_waitcnt vmcnt(0)")
    for r in range(8):
        k(f"v_lshlrev_b32 v12, 16, v{RES+r}\nv_and_b32 v13, 0xffff0000, v{RES+r}")
        k(f"v_add_f32 v{ACC+2*r}, v{ACC+2*r}, v12\nv_add_f32 v{ACC+2*r+1}, v{ACC+2*r+1}, v13")
    for r in range(8): k(f"v_cvt_pk_bf16_f32 v{ACC+r}, v{ACC+2*r}, v{ACC+2*r+1}")
    if k3:
        k(f"s_add_u32 s25, s31, {WS_H}")
        for g in range(4): k(f"buffer_store_dwordx2 {vr(ACC+2*g,2)}, v3, s[16:19], s25 offen offset:{16*g}")
        k(f"v_mov_b32 v{vSum}, 0\nv_mov_b32 v{vSq}, 0\nv_mov_b32 v{ONES}, 0x3f803f80")
        for r in range(8):
            k(f"v_dot2_f32_bf16 v{vSum}, v{ACC+r}, v{ONES}, v{vSum}\nv_dot2_f32_bf16 v{vSq}, v{ACC+r}, v{ACC+r}, v{vSq}")
        k("s_nop 2")
        half_sum(k, [vSum, vSq], [12, 13])
        k(f"""
        v_lshlrev_b32 v10, 7, v5          ; m*128
        s_lshl_b32 s38, s29, 7            ; row0*128
        s_lshr_b32 s39, s30, 2            ; (n0/32)*8
        s_add_u32 s38, s38, s39
        s_add_u32 s38, s38, {WS_ST}
        buffer_store_dwordx2 v[{vSum}:{vSq}], v10, s[16:19], s38 offen
        """)
        stamp_out(k, 7, "s[16:19]", 4)
        colsum_part(k, L, 88)
    else:
        for g in range(4): k(f"buffer_store_dwordx2 {vr(ACC+2*g,2)}, v3, s[8:11], s31 offen offset:{16*g}")
        stamp_out(k, 7, "s[16:19]", 4)
    k.label(f"L_{L}_end")
    k("s_endpgm")
    return k

def gen_qkv(KC=64, R=5):
    name = "qkv_kernel"; L = name
    c = cfg64(512, KC, R, 1024, 0, "s[8:11]", 1024)
    k = Kern(name, (272, 1, 1), (256, 1, 1), 81920, 128)
    ACC = c.ACC; ACC1 = 80; ONES = 96; vS = 100
    k(f"s_cmp_ge_u32 s2, 272\ns_cbranch_scc1 L_{L}_end")
    k("s_load_dwordx4 s[4:7], s[0:1], 0\ns_load_dwordx4 s[32:35], s[0:1], 16\ns_load_dwordx2 s[36:37], s[0:1], 88")
    stamp(k, 0)
    lane_consts(k)
    k("s_waitcnt lgkmcnt(0)")
    srd(k, 8, 4, 2097152); srd(k, 12, 6, 524288); srd(k, 16, 36, WS_SIZE)
    for i in range(16): k(f"v_mov_b32 v{ACC+i}, 0\nv_mov_b32 v{ACC1+i}, 0")
    for i in range(4): k(f"v_mov_b32 v{ONES+i}, 0x3f803f80")
    for i in range(8): k(f"v_mov_b32 v{vS+i}, 0")
    def hook(b):
        k(f"v_mfma_f32_32x32x16_bf16 {vr(ACC1,16)}, {vr(b+4,4)}, {vr(ONES,4)}, {vr(ACC1,16)}")
        for r in range(4):
            k(f"v_dot2_f32_bf16 v{vS+r}, v{b+r}, v{ONES}, v{vS+r}")
            k(f"v_dot2_f32_bf16 v{vS+4+r}, v{b+r}, v{b+r}, v{vS+4+r}")
    def ln_stats(scale):
        k(f"""
        v_add_f32 v{vS}, v{vS}, v{vS+1}
        v_add_f32 v{vS+2}, v{vS+2}, v{vS+3}
        v_add_f32 v{vS+4}, v{vS+4}, v{vS+5}
        v_add_f32 v{vS+6}, v{vS+6}, v{vS+7}
        v_add_f32 v{vS}, v{vS}, v{vS+2}
        v_add_f32 v{vS+1}, v{vS+4}, v{vS+6}
        """)
        half_sum(k, [vS, vS+1], [12, 13])
        k(f"""
        v_mul_f32 v12, {fhex(-1.0/512)}, v{vS}
        v_mul_f32 v13, {fhex(1.0/512)}, v{vS+1}
        v_fma_f32 v13, -v12, v12, v13
        v_max_f32 v13, 0, v13
        v_add_f32 v13, {fhex(1e-5)}, v13
        v_rsq_f32 v13, v13
        s_nop 0
        v_mul_f32 v13, {fhex(scale)}, v13
        """)
        for r in range(16):
            k(f"v_fma_f32 v{ACC+r}, v12, v{ACC1+r}, v{ACC+r}\nv_mul_f32 v{ACC+r}, v{ACC+r}, v13")
        for r in range(8): k(f"v_cvt_pk_bf16_f32 v{ACC+r}, v{ACC+2*r}, v{ACC+2*r+1}")
    k(f"s_cmp_ge_u32 s2, 256\ns_cbranch_scc1 L_{L}_kv")
    k("s_lshr_b32 s21, s2, 3\ns_lshl_b32 s21, s21, 6\ns_and_b32 s22, s2, 7\ns_lshl_b32 s22, s22, 6")
    gemm_setup(k, c)
    k(f"""
    s_lshl_b32 s29, s23, 5
    s_add_u32 s29, s29, s21
    s_lshl_b32 s30, s24, 5
    s_add_u32 s30, s30, s22
    s_lshl_b32 s31, s29, 10
    s_lshl_b32 s25, s30, 1
    s_add_u32 s31, s31, s25
    v_lshlrev_b32 v3, 10, v5
    v_lshl_add_u32 v3, v7, 3, v3
    """)
    gemm_main(k, c, kstep_hook=hook)
    ln_stats(QSCALE)
    for g in range(4): k(f"buffer_store_dwordx2 {vr(ACC+2*g,2)}, v3, s[16:19], s31 offen offset:{16*g}")
    stamp_out(k, 7, "s[16:19]", 4)
    k(f"s_branch L_{L}_end")
    k.label(f"L_{L}_kv")
    srd(k, 40, 32, 16384); srd(k, 44, 34, 16384)
    KC2 = 64; R2 = 3; RX = 128; XB = 128 * RX; WB = KC2 * 32; VO = WB + 128; SB = XB + 2 * WB + 256; NST = 8
    assert SB * R2 <= 81920
    vDX, vDW, vXb, vXa, vWb, vWa = 1, 2, 16, 24, 32, 33
    k(f"""
    s_sub_u32 s21, s2, 256
    s_lshl_b32 s21, s21, 7
    v_lshrrev_b32 v10, 3, v4
    v_and_b32 v11, 7, v4
    v_lshrrev_b32 v12, 4, v4
    s_lshl_b32 s25, s20, 2
    v_add_u32 v12, s25, v12
    v_and_b32 v12, 7, v12
    v_xor_b32 v11, v11, v12
    v_lshlrev_b32 v10, 10, v10
    v_lshl_add_u32 v{vDX}, v11, 4, v10
    v_lshlrev_b32 v{vDW}, 4, v4
    s_lshl_b32 s25, s20, 3
    s_add_u32 s25, s25, s21
    s_lshl_b32 s26, s25, 10
    s_lshl_b32 s28, s20, 10
    v_bfe_u32 v10, v5, 1, 3
    v_xor_b32 v10, v10, v7
    v_lshlrev_b32 v10, 4, v10
    v_lshl_add_u32 v10, v5, 7, v10
    s_lshl_b32 s25, s20, 12           ; w*32 rows*128
    """)
    for ks in range(4): k(f"v_xor_b32 v{vXb+ks}, {32*ks}, v10\nv_add_u32 v{vXb+ks}, s25, v{vXb+ks}")
    k(f"""
    v_bfe_u32 v10, v0, 2, 2
    v_lshl_add_u32 v11, v7, 3, v10
    v_lshlrev_b32 v11, 5, v11         ; row*32
    v_and_b32 v12, 3, v0
    v_lshl_add_u32 v11, v12, 3, v11   ; + (i&3)*8
    v_bfe_u32 v12, v0, 4, 1
    s_movk_i32 s31, {VO}
    v_mad_u32_u24 v{vWb}, v12, s31, v11
    v_add_u32 v{vWb}, {XB}, v{vWb}
    s_cmp_lt_u32 s20, 2
    s_cselect_b32 s40, s40, s44
    s_cselect_b32 s41, s41, s45
    s_and_b32 s29, s20, 1
    s_lshl_b32 s29, s29, 10
    s_lshr_b32 s30, s20, 1
    s_mul_i32 s30, s30, {VO}
    s_add_u32 s30, s30, s29
    """)
    def kvdma(st):
        slot = (st % R2) * SB
        for j in range(4):
            k(f"""
            s_add_u32 s38, s28, {slot + j*4096}
            s_mov_b32 m0, s38
            s_add_u32 s39, s26, {j*32*1024 + st*KC2*2}
            buffer_load_dwordx4 v{vDX}, s[8:11], s39 offen lds
            """)
        k(f"""
        s_add_u32 s38, s30, {slot + XB}
        s_mov_b32 m0, s38
        s_add_u32 s39, s29, {st*WB}
        buffer_load_dwordx4 v{vDW}, s[40:43], s39 offen lds
        """)
    issued = 0
    for st in range(R2): kvdma(st); issued += 1
    FR = c.FR
    for st in range(NST):
        k(f"s_waitcnt vmcnt({(issued - st - 1) * 5})\ns_barrier")
        if issued < NST and st > 0: kvdma(issued); issued += 1
        slot = (st % R2) * SB
        for ks in range(4): k(f"v_add_u32 v{vXa+ks}, {slot}, v{vXb+ks}")
        k(f"v_add_u32 v{vWa}, {slot}, v{vWb}")
        def rd(ks):
            b = FR[ks % 2]
            k(f"ds_read_b128 {vr(b,4)}, v{vXa+ks}")
            k(f"ds_read_b64_tr_b16 {vr(b+4,2)}, v{vWa} offset:{ks*512}")
            k(f"ds_read_b64_tr_b16 {vr(b+6,2)}, v{vWa} offset:{ks*512+128}")
        rd(0)
        for ks in range(4):
            if ks < 3: rd(ks+1); k("s_waitcnt lgkmcnt(3)")
            else: k("s_waitcnt lgkmcnt(0)")
            b = FR[ks % 2]
            k(f"v_mfma_f32_32x32x16_bf16 {vr(ACC,16)}, {vr(b+4,4)}, {vr(b,4)}, {vr(ACC,16)}")
            hook(b)
    k("s_nop 15")
    ln_stats(1.0)
    vSq = vS
    k(f"""
    s_lshl_b32 s25, s20, 5
    s_add_u32 s25, s25, s21
    v_lshlrev_b32 v10, 4, v5
    v_lshl_add_u32 v10, v7, 3, v10
    s_lshl_b32 s38, s25, 5            ; tile*1024
    s_add_u32 s39, s38, {WS_K}
    buffer_store_dwordx2 {vr(ACC,2)}, v10, s[16:19], s39 offen
    buffer_store_dwordx2 {vr(ACC+2,2)}, v10, s[16:19], s39 offen offset:512
    v_mov_b32 v{vSq}, 0
    """)
    for r in range(4): k(f"v_dot2_f32_bf16 v{vSq}, v{ACC+r}, v{ACC+r}, v{vSq}")
    k(f"""
    v_and_b32 v11, 19, v5             ; 16i + (kk&3)
    v_bfe_u32 v12, v5, 2, 1
    v_lshl_add_u32 v11, v12, 3, v11
    v_bfe_u32 v12, v5, 3, 1
    v_lshl_add_u32 v11, v12, 2, v11   ; pos
    v_lshlrev_b32 v11, 1, v11
    v_lshl_add_u32 v11, v7, 14, v11   ; + 4h*4096
    s_lshl_b32 s38, s25, 1
    s_add_u32 s39, s38, {WS_VT}
    v_mov_b32 v31, v{vSq}
    """)
    for r in range(4):
        d0 = (r & 1) * 2 + (r >> 1) * 8
        k(f"s_add_u32 s38, s39, {d0*4096}")
        k(f"buffer_store_short v{ACC+4+r}, v11, s[16:19], s38 offen")
        k(f"s_add_u32 s38, s39, {(d0+1)*4096}")
        k(f"buffer_store_short_d16_hi v{ACC+4+r}, v11, s[16:19], s38 offen")
    k(f"""
    v_permlane32_swap_b32 v{vSq}, v31
    s_nop 1
    v_add_f32 v{vSq}, v{vSq}, v31
    s_nop 1
    v_max_f32_dpp v{vSq}, v{vSq}, v{vSq} quad_perm:[1,0,3,2] row_mask:0xf bank_mask:0xf
    s_nop 1
    v_max_f32_dpp v{vSq}, v{vSq}, v{vSq} quad_perm:[2,3,0,1] row_mask:0xf bank_mask:0xf
    s_nop 1
    v_max_f32_dpp v{vSq}, v{vSq}, v{vSq} row_ror:4 row_mask:0xf bank_mask:0xf
    s_nop 1
    v_max_f32_dpp v{vSq}, v{vSq}, v{vSq} row_ror:8 row_mask:0xf bank_mask:0xf
    s_nop 1
    v_mov_b32 v31, v{vSq}
    s_nop 1
    v_permlane16_swap_b32 v{vSq}, v31
    s_nop 1
    v_max_f32 v{vSq}, v{vSq}, v31
    s_lshr_b32 s38, s25, 3            ; tile*4
    s_add_u32 s38, s38, {WS_KN}
    v_mov_b32 v10, 0
    buffer_store_dword v{vSq}, v10, s[16:19], s38 offen
    s_cmp_lg_u32 s25, 0
    s_cbranch_scc1 L_{L}_end
    v_mov_b32 v16, 0
    v_mov_b32 v17, 0
    v_mov_b32 v18, 0
    v_mov_b32 v19, 0
    s_mov_b32 s38, {WS_CS}
    """)
    for i in range(14):
        k(f"buffer_store_dwordx4 v[16:19], v{vDW}, s[16:19], s38 offen\ns_add_u32 s38, s38, 1024")
    k.label(f"L_{L}_end")
    k("s_endpgm")
    return k

def gen_ffn(KC=64, R=3):
    name = "ffn_kernel"; L = name
    c = G()
    c.WM, c.WN, c.MT, c.NT, c.NMAT, c.BN = 2, 4, 2, 1, 2, 128
    c.K, c.KC, c.R, c.ldx, c.xbase, c.xsrd, c.ldw, c.wsrd = 512, KC, R, 1024, WS_H, "s[16:19]", 3584, ["s[8:11]", "s[12:15]"]
    c.vDX, c.vDW = 1, 2
    c.vXb, c.vXa, c.vWb, c.vWa = 16, 24, 32, 33
    c.FR = [36, 52]
    c.ACC = 68 + 0
    c.ACC = 72
    SB = 128 * KC * 2 + 2 * KC * 256
    k = Kern(name, (224, 1, 1), (512, 1, 1), SB * R, 232)
    ST = 136
    CS = 200
    k(f"s_cmp_ge_u32 s2, 224\ns_cbranch_scc1 L_{L}_end")
    k("s_load_dwordx4 s[4:7], s[0:1], 48\ns_load_dwordx2 s[36:37], s[0:1], 88")
    stamp(k, 0)
    lane_consts(k)
    k("s_waitcnt lgkmcnt(0)")
    srd(k, 8, 4, 1835008); srd(k, 12, 6, 1835008); srd(k, 16, 36, WS_SIZE)
    k(f"s_mul_i32 s21, s2, 4682\ns_lshr_b32 s21, s21, 16\ns_mul_i32 s22, s21, 14\ns_sub_u32 s22, s2, s22\ns_lshl_b32 s21, s21, 7\ns_lshl_b32 s22, s22, 7")
    gemm_setup(k, c)
    for i in range(64): k(f"v_mov_b32 v{c.ACC+i}, 0")
    k(f"""
    s_lshl_b32 s29, s23, 6
    s_add_u32 s29, s29, s21
    s_lshl_b32 s30, s24, 5
    s_add_u32 s30, s30, s22           ; wave n0
    """)
    def extra():
        k(f"""
        v_lshlrev_b32 v3, 7, v5
        s_lshl_b32 s25, s29, 7
        s_add_u32 s25, s25, {WS_ST}
        """)
        for mt in range(2):
            for j in range(8):
                k(f"buffer_load_dwordx4 {vr(ST+32*mt+4*j,4)}, v3, s[16:19], s25 offen offset:{16*j}")
            if mt == 0: k("s_add_u32 s25, s25, 4096")
        k(f"""
        v_lshlrev_b32 v3, 4, v7
        s_lshl_b32 s25, s30, 2
        s_add_u32 s25, s25, {WS_CS}
        """)
        for mat in range(2):
            for g in range(4):
                k(f"buffer_load_dwordx4 {vr(CS+16*mat+4*g,4)}, v3, s[16:19], s25 offen offset:{32*g}")
            if mat == 0: k(f"s_add_u32 s25, s25, {1792*4}")
    gemm_main(k, c, extra, 24)
    k("s_waitcnt vmcnt(0)")
    GA = -2.0 * 0.7978845608028654 * 1.4426950408889634
    k(f"v_mov_b32 v15, {fhex(GA)}\ns_mov_b32 s41, {fhex(GA*0.044715)}")
    k(f"""
    v_lshlrev_b32 v3, 1, v5
    s_movk_i32 s25, 1792
    v_mul_lo_u32 v3, v3, s25
    v_lshl_add_u32 v3, v7, 3, v3      ; m*3584 + 8h
    s_mul_i32 s31, s29, 3584
    s_lshl_b32 s25, s30, 1
    s_add_u32 s31, s31, s25
    s_add_u32 s31, s31, {WS_ACT}
    """)
    for mt in range(2):
        b = ST + 32 * mt
        for j in range(1, 16): k(f"v_add_f32 v{b}, v{b}, v{b+2*j}\nv_add_f32 v{b+1}, v{b+1}, v{b+2*j+1}")
        k(f"""
        v_mul_f32 v12, {fhex(-1.0/512)}, v{b}
        v_mul_f32 v13, {fhex(1.0/512)}, v{b+1}
        v_fma_f32 v13, -v12, v12, v13
        v_max_f32 v13, 0, v13
        v_add_f32 v13, {fhex(1e-5)}, v13
        v_rsq_f32 v13, v13
        s_nop 0
        """)
        g0 = c.ACC + 16 * mt; u0 = c.ACC + 32 + 16 * mt
        for r in range(16):
            k(f"""
            v_fma_f32 v{g0+r}, v12, v{CS+r}, v{g0+r}
            v_fma_f32 v{u0+r}, v12, v{CS+16+r}, v{u0+r}
            v_mul_f32 v{g0+r}, v{g0+r}, v13
            v_mul_f32 v{u0+r}, v{u0+r}, v13
            v_mul_f32 v14, v{g0+r}, v{g0+r}
            v_fma_f32 v14, v14, s41, v15
            v_mul_f32 v14, v14, v{g0+r}
            v_exp_f32 v14, v14
            v_mul_f32 v{u0+r}, v{u0+r}, v{g0+r}
            v_add_f32 v14, 1.0, v14
            v_rcp_f32 v14, v14
            s_nop 0
            v_mul_f32 v{u0+r}, v{u0+r}, v14
            """)
        for r in range(8): k(f"v_cvt_pk_bf16_f32 v{u0+r}, v{u0+2*r}, v{u0+2*r+1}")
        for g in range(4): k(f"buffer_store_dwordx2 {vr(u0+2*g,2)}, v3, s[16:19], s31 offen offset:{16*g}")
        if mt == 0: k(f"s_add_u32 s31, s31, {32*3584}")
    stamp_out(k, 7, "s[16:19]", 8)
    k.label(f"L_{L}_end")
    k("s_endpgm")
    return k

def emit(kerns, path):
    hdr = open(f"cdna_kernels/{NAME}.s.ref").read().split("; Override launch")[0]
    s = hdr
    for k in kerns:
        s += f"; @launch kernel={k.name} grid=({k.grid[0]},{k.grid[1]},{k.grid[2]}) block=({k.block[0]},{k.block[1]},{k.block[2]}) lds={k.lds}\n"
    s += '.amdgcn_target "amdgcn-amd-amdhsa--gfx950"\n.text\n'
    for k in kerns: s += k.text()
    s += '.section .rodata,"a"\n'
    for k in kerns: s += k.desc()
    open(path, "w").write(s)

if __name__ == "__main__":
    if len(sys.argv) > 1 and sys.argv[1] == "stamp":
        STAMP = True
        emit([gen_qkv(), gen_attn(), gen_res("k3"), gen_ffn(), gen_res("k5")], "full_stamp.s")
        sys.exit(0)
    emit([gen_qkv(), gen_attn(), gen_res("k3"), gen_ffn(), gen_res("k5")], "full.s")
```

```python
import sys
NAME = "sequential_preLN__grouped_kv_mqa__glu_gated_geglu__prompt"
WS_Q, WS_K, WS_VT, WS_KN, WS_CS, WS_ST, WS_O, WS_H, WS_ACT = 0, 0x200000, 0x210000, 0x220000, 0x221000, 0x230000, 0x300000, 0x500000, 0x800000
WS_SIZE = 268435456

class Kern:
    def __init__(self, name, grid, block, lds, nvgpr, nsgpr=100):
        self.name, self.grid, self.block, self.lds, self.nvgpr, self.nsgpr = name, grid, block, lds, nvgpr, nsgpr
        self.L = []
    def __call__(self, s):
        for line in s.split("\n"):
            line = line.strip()
            if line: self.L.append("    " + line)
    def label(self, s): self.L.append(s + ":")
    def text(self):
        return f".globl {self.name}\n.p2align 8\n.type {self.name},@function\n{self.name}:\n" + "\n".join(self.L) + "\n"
    def desc(self):
        nv = (self.nvgpr + 3) // 4 * 4
        return f""".p2align 6
.amdhsa_kernel {self.name}
  .amdhsa_next_free_vgpr {nv}
  .amdhsa_next_free_sgpr {self.nsgpr}
  .amdhsa_accum_offset {nv}
  .amdhsa_group_segment_fixed_size 0
  .amdhsa_kernarg_size 96
  .amdhsa_user_sgpr_count 2
  .amdhsa_user_sgpr_kernarg_segment_ptr 1
  .amdhsa_system_sgpr_workgroup_id_x 1
.end_amdhsa_kernel
"""
STAMP = False
def stamp(k, i):
    if STAMP: k(f"s_memtime s[{60+2*i}:{61+2*i}]")
def stamp_out(k, n, wsrd, nwaves, base=0x1000000):
    if not STAMP: return
    k("s_waitcnt vmcnt(0) lgkmcnt(0)")
    k(f"s_memtime s[{60+2*n}:{61+2*n}]\ns_waitcnt lgkmcnt(0)")
    k(f"s_mul_i32 s58, s2, {nwaves}\ns_add_u32 s58, s58, s20\ns_lshl_b32 s58, s58, 6\ns_add_u32 s58, s58, {base}\nv_mov_b32 v1, 0")
    for i in range(1, n+1):
        k(f"s_sub_u32 s59, s{60+2*i}, s60\nv_mov_b32 v2, s59\nbuffer_store_dword v2, v1, {wsrd}, s58 offen offset:{4*(i-1)}")
def vr(b, n): return f"v[{b}:{b+n-1}]"

def srd(k, d, ptr_s, size):
    k(f"s_mov_b32 s{d}, s{ptr_s}\ns_mov_b32 s{d+1}, s{ptr_s+1}\ns_mov_b32 s{d+2}, {size}\ns_mov_b32 s{d+3}, 0x00020000")

def gen_attn():
    VBASE = 65536; VRS = 4112; CBASE = VBASE + 17 * VRS
    CBASE = (CBASE + 15) // 16 * 16
    FLAG = CBASE + 4 * 4608
    LDS = FLAG + 64
    k = Kern("attn_kernel", (256, 1, 1), (512, 1, 1), LDS, 172)
    QA, QB = 8, 12; KF = [16, 20]; VF = [24, 32]; PA, PB = 40, 48
    CA, CB = 64, 80; SA, SB = 96, 112; OA, OB = 128, 144
    vL16, vK, vV = 1, 2, 3
    k(f"""
    s_cmp_ge_u32 s2, 256
    s_cbranch_scc1 L_attn_end
    s_load_dwordx2 s[4:5], s[0:1], 88
    s_load_dwordx4 s[32:35], s[0:1], 48
    s_load_dwordx2 s[60:61], s[0:1], 32
    s_load_dwordx2 s[62:63], s[0:1], 64
    v_and_b32 v4, 63, v0
    v_lshrrev_b32 v5, 6, v0
    v_lshlrev_b32 v{vL16}, 4, v4
    v_readfirstlane_b32 s20, v5
    v_and_b32 v6, 31, v0
    v_lshlrev_b32 v6, 5, v6
    v_bfe_u32 v7, v0, 5, 1
    v_lshl_or_b32 v6, v7, 4, v6       ; (l&31)*32 + h*16
    v_lshlrev_b32 v57, 2, v4
    s_waitcnt lgkmcnt(0)
    """)
    srd(k, 8, 4, WS_SIZE)
    k(f"""
    s_and_b32 s21, s20, 3
    s_lshr_b32 s22, s20, 2
    s_lshl_b32 s24, s2, 13
    s_lshl_b32 s23, s21, 11
    s_add_u32 s24, s24, s23
    s_mov_b32 s25, {WS_KN}
    buffer_load_dwordx4 {vr(QA,4)}, v6, s[8:11], s24 offen
    buffer_load_dwordx4 {vr(QB,4)}, v6, s[8:11], s24 offen offset:1024
    buffer_load_dword v56, v57, s[8:11], s25 offen
    s_lshl_b32 s25, s21, 12           ; (w&3)*4096
    s_lshl_b32 s26, s22, 15
    s_add_u32 s25, s25, s26
    s_mul_i32 s28, s20, {2*VRS}
    s_lshl_b32 s29, s20, 13
    """)
    for ph in range(2):
        for j in range(4):
            k(f"""
            s_add_u32 s26, s25, {ph*16384 + j*1024}
            s_mov_b32 m0, s26
            s_add_u32 s27, s26, {WS_K}
            buffer_load_dwordx4 v{vL16}, s[8:11], s27 offen lds
            """)
        for d in range(2):
            for c in (ph, 2 + ph):
                k(f"""
                s_add_u32 s26, s28, {VBASE + d*VRS + c*1024}
                s_mov_b32 m0, s26
                s_add_u32 s27, s29, {WS_VT + d*4096 + c*1024}
                buffer_load_dwordx4 v{vL16}, s[8:11], s27 offen lds
                """)
    srd(k, 40, 32, 1835008); srd(k, 44, 34, 1835008)
    XF = SA
    k(f"""
    s_lshl_b32 s38, s2, 2
    s_add_u32 s38, s38, s21           ; W
    s_cmp_lg_u32 s22, 0
    s_cselect_b32 s38, 1000, s38
    s_cmp_ge_u32 s38, 896
    s_cselect_b32 s52, 0, 1
    s_cbranch_scc1 L_attn_nocs
    s_cmp_ge_u32 s38, 448
    s_cselect_b32 s39, 448, 0
    s_cselect_b32 s48, 1792, 0
    s_cselect_b32 s40, s44, s40
    s_cselect_b32 s41, s45, s41
    s_sub_u32 s38, s38, s39           ; rem
    s_mul_i32 s39, s38, 9363
    s_lshr_b32 s39, s39, 16           ; rc
    s_mul_i32 s49, s39, 7
    s_sub_u32 s49, s38, s49           ; cb
    s_mul_i32 s50, s39, {8*3584}
    s_lshl_b32 s51, s49, 9
    s_add_u32 s50, s50, s51
    v_lshlrev_b32 v58, 3, v4
    """)
    for r in range(8):
        k(f"buffer_load_dwordx2 {vr(XF+2*r,2)}, v58, s[40:43], s50 offen")
        if r < 7: k(f"s_add_u32 s50, s50, 3584")
    k("s_branch L_attn_nopf")
    k.label("L_attn_nocs")
    srd(k, 40, 60, 524288); srd(k, 44, 62, 1835008)
    k(f"""
    s_cmp_eq_u32 s22, 0
    s_cbranch_scc1 L_attn_nopf
    s_lshl_b32 s38, s2, 2
    s_add_u32 s38, s38, s21
    s_lshl_b32 s39, s38, 9
    s_mul_i32 s50, s38, 1792
    buffer_load_dwordx4 v[160:163], v{vL16}, s[40:43], s39 offen
    buffer_load_dwordx4 v[164:167], v{vL16}, s[44:47], s50 offen
    buffer_load_dwordx4 v[168:171], v{vL16}, s[44:47], s50 offen offset:1024
    s_mov_b32 s52, 2
    """)
    k.label("L_attn_nopf")
    k(f"""
    v_and_b32 v5, 255, v0
    v_lshlrev_b32 v5, 4, v5
    v_mov_b32 v60, 0x3f803f80
    v_mov_b32 v61, 0x3f803f80
    v_mov_b32 v62, 0x3f803f80
    v_mov_b32 v63, 0x3f803f80
    v_add_u32 v5, {VBASE + 16*VRS}, v5
    ds_write_b128 v5, v[60:63]
    v_mov_b32 v5, {FLAG}
    v_mov_b32 v60, 0
    ds_write_b32 v5, v60
    s_mov_b32 s53, 0                  ; pass
    """)
    k("s_cmp_lg_u32 s52, 1\ns_cbranch_scc1 L_attn_w16\ns_waitcnt vmcnt(24)\ns_branch L_attn_wd")
    k.label("L_attn_w16")
    k("s_cmp_lg_u32 s52, 2\ns_cbranch_scc1 L_attn_w16b\ns_waitcnt vmcnt(19)\ns_branch L_attn_wd")
    k.label("L_attn_w16b")
    k("s_waitcnt vmcnt(16)")
    k.label("L_attn_wd")
    k(f"""
    v_max_f32_dpp v56, v56, v56 quad_perm:[1,0,3,2] row_mask:0xf bank_mask:0xf
    v_mov_b32 v4, 0
    v_mov_b32 v5, 0
    v_max_f32_dpp v56, v56, v56 quad_perm:[2,3,0,1] row_mask:0xf bank_mask:0xf
    v_dot2_f32_bf16 v4, v{QA}, v{QA}, v4
    v_dot2_f32_bf16 v5, v{QB}, v{QB}, v5
    v_max_f32_dpp v56, v56, v56 row_ror:4 row_mask:0xf bank_mask:0xf
    v_dot2_f32_bf16 v4, v{QA+1}, v{QA+1}, v4
    v_dot2_f32_bf16 v5, v{QB+1}, v{QB+1}, v5
    v_max_f32_dpp v56, v56, v56 row_ror:8 row_mask:0xf bank_mask:0xf
    v_dot2_f32_bf16 v4, v{QA+2}, v{QA+2}, v4
    v_dot2_f32_bf16 v5, v{QB+2}, v{QB+2}, v5
    v_mov_b32 v57, v56
    v_dot2_f32_bf16 v4, v{QA+3}, v{QA+3}, v4
    v_dot2_f32_bf16 v5, v{QB+3}, v{QB+3}, v5
    s_nop 1
    v_permlane16_swap_b32 v56, v57
    s_nop 1
    v_max_f32 v56, v56, v57
    v_mov_b32 v58, v4
    v_mov_b32 v57, v56
    v_mov_b32 v59, v5
    s_nop 1
    v_permlane32_swap_b32 v56, v57
    v_permlane32_swap_b32 v4, v58
    v_permlane32_swap_b32 v5, v59
    s_nop 1
    v_max_f32 v56, v56, v57
    v_add_f32 v4, v4, v58
    v_add_f32 v5, v5, v59
    v_mul_f32 v4, v4, v56
    v_mul_f32 v5, v5, v56
    v_sqrt_f32 v4, v4
    v_sqrt_f32 v5, v5
    """)
    k("s_cmp_lg_u32 s52, 1\ns_cbranch_scc1 L_attn_w8\ns_waitcnt vmcnt(16) lgkmcnt(0)\ns_branch L_attn_wd2")
    k.label("L_attn_w8")
    k("s_cmp_lg_u32 s52, 2\ns_cbranch_scc1 L_attn_w8b\ns_waitcnt vmcnt(11) lgkmcnt(0)\ns_branch L_attn_wd2")
    k.label("L_attn_w8b")
    k("s_waitcnt vmcnt(8) lgkmcnt(0)")
    k.label("L_attn_wd2")
    k("s_barrier")
    k(f"""
    s_cmp_lg_u32 s52, 1
    s_cbranch_scc1 L_attn_pass
    v_mov_b32 v58, 0x00003f80
    v_mov_b32 v59, 0x3f800000
    v_mov_b32 v60, 0
    v_mov_b32 v61, 0
    v_mov_b32 v62, 0
    v_mov_b32 v63, 0
    s_waitcnt vmcnt(0)
    """)
    for r in range(8):
        k(f"""
        v_dot2_f32_bf16 v60, v{XF+2*r}, v58, v60
        v_dot2_f32_bf16 v61, v{XF+2*r}, v59, v61
        v_dot2_f32_bf16 v62, v{XF+2*r+1}, v58, v62
        v_dot2_f32_bf16 v63, v{XF+2*r+1}, v59, v63
        """)
    k(f"""
    s_lshl_b32 s51, s49, 8
    s_add_u32 s51, s51, s48
    s_lshl_b32 s51, s51, 2
    s_add_u32 s51, s51, {WS_CS}
    s_nop 2
    buffer_atomic_add_f32 v60, v{vL16}, s[8:11], s51 offen
    buffer_atomic_add_f32 v61, v{vL16}, s[8:11], s51 offen offset:4
    buffer_atomic_add_f32 v62, v{vL16}, s[8:11], s51 offen offset:8
    buffer_atomic_add_f32 v63, v{vL16}, s[8:11], s51 offen offset:12
    """)
    k.label("L_attn_pass")
    k(f"""
    s_lshl_b32 s26, s22, 15
    v_add_u32 v{vK}, s26, v{vL16}
    v_and_b32 v58, 31, v0
    v_min_u32 v58, 16, v58
    s_movk_i32 s27, {VRS}
    v_mul_lo_u32 v58, v58, s27
    v_lshl_add_u32 v58, v7, 4, v58
    s_lshl_b32 s26, s22, 11
    s_add_u32 s26, s26, {VBASE}
    v_add_u32 v{vV}, s26, v58
    ds_read_b128 {vr(KF[0],4)}, v{vK}
    ds_read_b128 {vr(KF[1],4)}, v{vK} offset:1024
    ds_read_b128 {vr(VF[0],4)}, v{vV}
    ds_read_b128 {vr(VF[0]+4,4)}, v{vV} offset:32
    """)
    for i in range(16): k(f"v_sub_f32 v{CA+i}, 0, v4\nv_sub_f32 v{CB+i}, 0, v5")
    for i in range(16): k(f"v_mov_b32 v{OA+i}, 0\nv_mov_b32 v{OB+i}, 0")
    k(f"""
    s_waitcnt lgkmcnt(3)
    v_mfma_f32_32x32x16_bf16 {vr(SA,16)}, {vr(KF[0],4)}, {vr(QA,4)}, {vr(CA,16)}
    v_mfma_f32_32x32x16_bf16 {vr(SB,16)}, {vr(KF[0],4)}, {vr(QB,4)}, {vr(CB,16)}
    s_mov_b32 s30, 16
    s_nop 7
    """)
    def unit(S, P, O, Q, C, kf, vf):
        for i in range(8): k(f"v_exp_f32 v{S+i}, v{S+i}")
        for i in range(4): k(f"v_cvt_pk_bf16_f32 v{P+i}, v{S+2*i}, v{S+2*i+1}")
        for i in range(8, 16):
            k(f"v_exp_f32 v{S+i}, v{S+i}")
            if i == 9: k(f"v_mfma_f32_32x32x16_bf16 {vr(O,16)}, {vr(vf,4)}, {vr(P,4)}, {vr(O,16)}")
        for i in range(4, 8): k(f"v_cvt_pk_bf16_f32 v{P+i}, v{S+2*i}, v{S+2*i+1}")
        k(f"v_mfma_f32_32x32x16_bf16 {vr(S,16)}, {vr(kf,4)}, {vr(Q,4)}, {vr(C,16)}")
        k("s_nop 0")
        k(f"v_mfma_f32_32x32x16_bf16 {vr(O,16)}, {vr(vf+4,4)}, {vr(P+4,4)}, {vr(O,16)}")
    k.label("L_attn_loop")
    k("s_cmp_lg_u32 s30, 9\ns_cbranch_scc1 L_attn_nb\ns_waitcnt vmcnt(0)\ns_barrier")
    k.label("L_attn_nb")
    for par in range(2):
        k(f"""
        s_waitcnt lgkmcnt(0)
        ds_read_b128 {vr(KF[par],4)}, v{vK} offset:{(2+par)*1024}
        ds_read_b128 {vr(VF[1-par],4)}, v{vV} offset:{(1+par)*64}
        ds_read_b128 {vr(VF[1-par]+4,4)}, v{vV} offset:{(1+par)*64+32}
        """)
        unit(SA, PA, OA, QA, CA, KF[1-par], VF[par])
        unit(SB, PB, OB, QB, CB, KF[1-par], VF[par])
    k(f"""
    v_add_u32 v{vK}, 2048, v{vK}
    v_add_u32 v{vV}, 128, v{vV}
    s_sub_u32 s30, s30, 1
    s_cmp_lg_u32 s30, 0
    s_cbranch_scc1 L_attn_loop
    s_waitcnt lgkmcnt(0)
    s_nop 15
    s_mul_i32 s26, s21, 4608
    s_add_u32 s26, s26, {CBASE}
    v_add_u32 v60, s26, v{vL16}
    v_lshrrev_b32 v61, 2, v{vL16}
    v_add_u32 v61, s26, v61
    v_mov_b32 v62, {FLAG}
    s_cmp_eq_u32 s22, 0
    s_cbranch_scc1 L_attn_lo
    ds_write_b128 v60, {vr(OA,4)}
    ds_write_b128 v60, {vr(OA+4,4)} offset:1024
    ds_write_b32 v61, v{OA+8} offset:2048
    ds_write_b128 v60, {vr(OB,4)} offset:2304
    ds_write_b128 v60, {vr(OB+4,4)} offset:3328
    ds_write_b32 v61, v{OB+8} offset:4352
    s_waitcnt lgkmcnt(0)
    s_barrier
    s_branch L_attn_join
    """)
    k.label("L_attn_lo")
    k(f"""
    s_barrier
    ds_read_b128 {vr(SA,4)}, v60
    ds_read_b128 {vr(SA+4,4)}, v60 offset:1024
    ds_read_b32 v{SA+8}, v61 offset:2048
    ds_read_b128 {vr(SB,4)}, v60 offset:2304
    ds_read_b128 {vr(SB+4,4)}, v60 offset:3328
    ds_read_b32 v{SB+8}, v61 offset:4352
    s_waitcnt lgkmcnt(0)
    """)
    for i in range(9): k(f"v_add_f32 v{OA+i}, v{OA+i}, v{SA+i}\nv_add_f32 v{OB+i}, v{OB+i}, v{SB+i}")
    k(f"""
    v_mov_b32 v58, v{OA+8}
    v_mov_b32 v59, v{OB+8}
    s_mov_b32 s26, 0x1f800000         ; 2^-64
    s_mov_b32 s27, 0x5f800000         ; 2^64
    v_permlane32_swap_b32 v{OA+8}, v58
    v_permlane32_swap_b32 v{OB+8}, v59
    s_nop 1
    v_cmp_nle_f32 s[54:55], s26, v{OA+8}
    v_cmp_nle_f32 s[56:57], s26, v{OB+8}
    v_cmp_nge_f32 vcc, s27, v{OA+8}
    s_or_b64 s[54:55], s[54:55], s[56:57]
    s_or_b64 s[54:55], s[54:55], vcc
    v_cmp_nge_f32 vcc, s27, v{OB+8}
    v_mov_b32 v63, 1
    s_or_b64 s[54:55], s[54:55], vcc
    s_cmp_eq_u64 s[54:55], 0
    s_cbranch_scc1 L_attn_join
    ds_write_b32 v62, v63
    s_waitcnt lgkmcnt(0)
    """)
    k.label("L_attn_join")
    k(f"""
    s_barrier
    ds_read_b32 v63, v62
    s_waitcnt lgkmcnt(0)
    v_readfirstlane_b32 s26, v63
    s_cmp_lg_u32 s53, 0
    s_cselect_b32 s26, 0, s26
    s_cmp_lg_u32 s26, 0
    s_cbranch_scc1 L_attn_slow
    s_cmp_lg_u32 s22, 0
    s_cbranch_scc1 L_attn_end
    v_rcp_f32 v58, v{OA+8}
    v_rcp_f32 v59, v{OB+8}
    s_nop 0
    """)
    for i in range(8): k(f"v_mul_f32 v{OA+i}, v{OA+i}, v58\nv_mul_f32 v{OB+i}, v{OB+i}, v59")
    for i in range(4): k(f"v_cvt_pk_bf16_f32 v{PA+i}, v{OA+2*i}, v{OA+2*i+1}\nv_cvt_pk_bf16_f32 v{PB+i}, v{OB+2*i}, v{OB+2*i+1}")
    k(f"""
    v_and_b32 v6, 31, v0
    v_lshlrev_b32 v6, 5, v6
    v_lshl_or_b32 v6, v7, 3, v6       ; row*32 + 8h
    s_add_u32 s24, s24, {WS_O}
    buffer_store_dwordx2 {vr(PA,2)}, v6, s[8:11], s24 offen
    buffer_store_dwordx2 {vr(PA+2,2)}, v6, s[8:11], s24 offen offset:16
    buffer_store_dwordx2 {vr(PB,2)}, v6, s[8:11], s24 offen offset:1024
    buffer_store_dwordx2 {vr(PB+2,2)}, v6, s[8:11], s24 offen offset:1040
    s_branch L_attn_end
    """)
    k.label("L_attn_slow")
    k(f"""
    s_mov_b32 s53, 1
    s_lshl_b32 s26, s22, 15
    v_add_u32 v{vK}, s26, v{vL16}
    v_mov_b32 v4, 0xff800000
    v_mov_b32 v5, 0xff800000
    s_mov_b32 s30, 32
    """)
    k.label("L_attn_mloop")
    k(f"""
    ds_read_b128 {vr(KF[0],4)}, v{vK}
    v_add_u32 v{vK}, 1024, v{vK}
    s_waitcnt lgkmcnt(0)
    v_mfma_f32_32x32x16_bf16 {vr(SA,16)}, {vr(KF[0],4)}, {vr(QA,4)}, 0
    v_mfma_f32_32x32x16_bf16 {vr(SB,16)}, {vr(KF[0],4)}, {vr(QB,4)}, 0
    s_nop 15
    s_nop 7
    """)
    for i in range(8): k(f"v_max3_f32 v4, v4, v{SA+2*i}, v{SA+2*i+1}\nv_max3_f32 v5, v5, v{SB+2*i}, v{SB+2*i+1}")
    k(f"""
    s_sub_u32 s30, s30, 1
    s_cmp_lg_u32 s30, 0
    s_cbranch_scc1 L_attn_mloop
    v_mov_b32 v58, v4
    v_mov_b32 v59, v5
    s_nop 1
    v_permlane32_swap_b32 v4, v58
    v_permlane32_swap_b32 v5, v59
    s_nop 1
    v_max_f32 v4, v4, v58
    v_max_f32 v5, v5, v59
    s_lshl_b32 s26, s22, 9            ; kh*512
    v_add_u32 v58, s26, v61
    s_sub_u32 s27, 512, s26
    v_add_u32 v59, s27, v61
    ds_write_b32 v58, v4
    ds_write_b32 v58, v5 offset:256
    s_waitcnt lgkmcnt(0)
    s_barrier
    ds_read_b32 v56, v59
    ds_read_b32 v57, v59 offset:256
    s_waitcnt lgkmcnt(0)
    v_max_f32 v4, v4, v56
    v_max_f32 v5, v5, v57
    s_barrier
    s_branch L_attn_pass
    """)
    k.label("L_attn_end")
    k("s_endpgm")
    return k

QSCALE = 0.25 * 1.4426950408889634
def fhex(x):
    import struct
    return "0x%08x" % struct.unpack("<I", struct.pack("<f", x))[0]

def lane_consts(k):
    k("""
    v_and_b32 v4, 63, v0
    v_lshrrev_b32 v6, 6, v0
    v_and_b32 v5, 31, v0
    v_readfirstlane_b32 s20, v6
    v_bfe_u32 v7, v0, 5, 1
    """)

def tr_addr(k, vdst, rw_shift, swz_mode):
    k(f"""
    v_bfe_u32 v10, v0, 2, 2           ; i>>2
    v_lshl_add_u32 v11, v7, 3, v10    ; row = 8h + (i>>2)
    v_lshlrev_b32 v11, {rw_shift}, v11
    v_bfe_u32 v12, v0, 4, 1           ; g&1
    v_bfe_u32 v13, v0, 1, 1           ; (i&3)>>1
    v_lshl_add_u32 v12, v12, 1, v13   ; chunk
    """)
    if swz_mode == 'r128':
        k("v_bfe_u32 v13, v0, 3, 1\nv_lshlrev_b32 v13, 2, v13\nv_xor_b32 v12, v12, v13")
    elif swz_mode == 'r256':
        k("v_lshlrev_b32 v13, 2, v10\nv_xor_b32 v12, v12, v13")
    k(f"""
    v_lshl_add_u32 v11, v12, 4, v11
    v_and_b32 v13, 1, v0
    v_lshl_add_u32 v{vdst}, v13, 3, v11
    """)

class G:
    pass

def log2(x):
    r = x.bit_length() - 1
    assert 1 << r == x
    return r

def gemm_setup(k, c):
    NW = c.WM * c.WN
    c.RX = c.KC * 2; c.LX = c.RX // 16; c.RPI = 64 // c.LX
    c.RW = c.BN * 2; c.CW = c.RW // 16; c.RPW = 64 // c.CW
    c.BM = c.WM * c.MT * 32
    c.NXI = c.BM * c.RX // 1024; c.NWI = c.KC * c.RW // 1024
    assert c.NXI % NW == 0 and c.NWI % NW == 0, (c.NXI, c.NWI)
    c.XB = c.BM * c.RX; c.WB = c.KC * c.RW
    c.SB = c.XB + c.NMAT * c.WB
    c.KS = c.KC // 16; c.NST = c.K // c.KC
    c.DPS = (c.NXI + c.NMAT * c.NWI) // NW
    lw = log2(c.WM)
    k(f"s_and_b32 s23, s20, {c.WM-1}\ns_lshr_b32 s24, s20, {lw}")
    llx = log2(c.LX)
    k(f"v_lshrrev_b32 v10, {llx}, v4\nv_and_b32 v11, {c.LX-1}, v4\nv_lshrrev_b32 v12, 4, v4")
    if c.LX == 16:
        k("s_lshl_b32 s25, s20, 2\nv_add_u32 v12, s25, v12\nv_and_b32 v12, 15, v12")
    else:
        assert c.LX == 8
        k("s_lshl_b32 s25, s20, 2\nv_add_u32 v12, s25, v12\nv_and_b32 v12, 7, v12")
    k(f"v_xor_b32 v11, v11, v12\ns_mov_b32 s25, {c.ldx}\nv_mul_lo_u32 v10, v10, s25\nv_lshl_add_u32 v{c.vDX}, v11, 4, v10")
    lcw = log2(c.CW)
    k(f"v_lshrrev_b32 v10, {lcw}, v4\nv_and_b32 v11, {c.CW-1}, v4")
    if c.RW == 128: k("v_bfe_u32 v12, v4, 4, 1\nv_lshlrev_b32 v12, 2, v12\nv_xor_b32 v11, v11, v12")
    elif c.RW == 256: k("v_bfe_u32 v12, v4, 4, 2\nv_lshlrev_b32 v12, 2, v12\nv_xor_b32 v11, v11, v12")
    else: assert False
    k(f"s_mov_b32 s25, {c.ldw}\nv_mul_lo_u32 v10, v10, s25\nv_lshl_add_u32 v{c.vDW}, v11, 4, v10")
    k(f"""
    s_mul_i32 s25, s20, {c.RPI}
    s_add_u32 s25, s25, s21
    s_mul_i32 s26, s25, {c.ldx}
    s_add_u32 s26, s26, {c.xbase}
    s_mul_i32 s27, s20, {c.RPW * c.ldw}
    s_lshl_b32 s25, s22, 1
    s_add_u32 s27, s27, s25
    s_lshl_b32 s28, s20, 10
    """)
    gemm_prologue(k, c, c.NPRE)
    if c.LX == 16: k("v_and_b32 v10, 15, v5")
    else: k("v_bfe_u32 v10, v5, 1, 3")
    k(f"""
    v_xor_b32 v10, v10, v7
    v_lshlrev_b32 v10, 4, v10
    v_lshl_add_u32 v10, v5, {log2(c.RX)}, v10
    s_mul_i32 s25, s23, {c.MT * 32 * c.RX}
    """)
    for ks in range(c.KS):
        k(f"v_xor_b32 v{c.vXb+ks}, {32*ks}, v10\nv_add_u32 v{c.vXb+ks}, s25, v{c.vXb+ks}")
    tr_addr(k, 14, log2(c.RW), 'r128' if c.RW == 128 else 'r256')
    for nt in range(c.NT):
        k(f"s_mul_i32 s25, s24, {c.NT}\ns_add_u32 s25, s25, {nt}\ns_lshl_b32 s25, s25, 6\nv_xor_b32 v{c.vWb+nt}, s25, v14\nv_add_u32 v{c.vWb+nt}, {c.XB}, v{c.vWb+nt}")

def gemm_dma_list(c, st):
    NW = c.WM * c.WN
    slot = (st % c.R) * c.SB
    k0 = st * c.KC
    out = []
    for j in range(c.NXI // NW):
        out.append(f"""
        s_add_u32 s38, s28, {slot + j*NW*1024}
        s_mov_b32 m0, s38
        s_add_u32 s39, s26, {j*NW*c.RPI*c.ldx + k0*2}
        buffer_load_dwordx4 v{c.vDX}, {c.xsrd}, s39 offen lds
        """)
    for mat in range(c.NMAT):
        for j in range(c.NWI // NW):
            out.append(f"""
            s_add_u32 s38, s28, {slot + c.XB + mat*c.WB + j*NW*1024}
            s_mov_b32 m0, s38
            s_add_u32 s39, s27, {(j*NW*c.RPW + k0)*c.ldw}
            buffer_load_dwordx4 v{c.vDW}, {c.wsrd[mat]}, s39 offen lds
            """)
    return out

def gemm_prologue(k, c, npre=1):
    c.Q = [(st, a) for st in range(c.NST) for a in gemm_dma_list(c, st)]
    c.log = []
    while c.Q and c.Q[0][0] < npre:
        st, a = c.Q.pop(0); k(a); c.log.append(st)

def gemm_main(k, c, extra_hook=None, nextra=0, kstep_hook=None, per_ks=2):
    NST, R = c.NST, c.R
    nfr = c.MT + 2 * c.NMAT * c.NT
    stamp(k, 1)
    for st in range(NST):
        last = max(i for i, x in enumerate(c.log) if x == st)
        assert c.log.count(st) == c.DPS
        slot = (st % R) * c.SB
        for ks in range(c.KS): k(f"v_add_u32 v{c.vXa+ks}, {slot}, v{c.vXb+ks}")
        for nt in range(c.NT): k(f"v_add_u32 v{c.vWa+nt}, {slot}, v{c.vWb+nt}")
        k(f"s_waitcnt vmcnt({len(c.log) - 1 - last})\ns_barrier")
        if st < 4: stamp(k, 2 + st)
        def rd(ks):
            b = c.FR[ks % 2]
            for mt in range(c.MT):
                k(f"ds_read_b128 {vr(b+4*mt,4)}, v{c.vXa+ks} offset:{mt*32*c.RX}")
            b += 4 * c.MT
            for mat in range(c.NMAT):
                for nt in range(c.NT):
                    for t in range(2):
                        k(f"ds_read_b64_tr_b16 {vr(b+2*t,2)}, v{c.vWa+nt} offset:{mat*c.WB + ks*16*c.RW + t*4*c.RW}")
                    b += 4
        rd(0)
        for ks in range(c.KS):
            if ks + 1 < c.KS:
                rd(ks + 1); k(f"s_waitcnt lgkmcnt({nfr})")
            else: k("s_waitcnt lgkmcnt(0)")
            b = c.FR[ks % 2]
            for mat in range(c.NMAT):
                for nt in range(c.NT):
                    wf = b + 4*c.MT + 4*(mat*c.NT + nt)
                    for mt in range(c.MT):
                        a = c.ACC + 16 * ((mat*c.NT + nt) * c.MT + mt)
                        k(f"v_mfma_f32_32x32x16_bf16 {vr(a,16)}, {vr(wf,4)}, {vr(b+4*mt,4)}, {vr(a,16)}")
            if kstep_hook: kstep_hook(b)
            n = 0
            while c.Q and c.Q[0][0] <= st + R - 1 and (n < per_ks or (ks == c.KS - 1 and c.Q[0][0] == st + 1)):
                s2, a = c.Q.pop(0); k(a); c.log.append(s2); n += 1
            if not c.Q and extra_hook:
                extra_hook(); c.log += ['x'] * nextra; extra_hook = None
    k("s_nop 15")
    stamp(k, 6)

def half_sum(k, regs, tmps):
    for r, t in zip(regs, tmps): k(f"v_mov_b32 v{t}, v{r}")
    k("s_nop 1")
    for r, t in zip(regs, tmps): k(f"v_permlane32_swap_b32 v{r}, v{t}")
    k("s_nop 1")
    for r, t in zip(regs, tmps): k(f"v_add_f32 v{r}, v{r}, v{t}")

def colsum_part(k, L, XF):
    srd(k, 40, 32, 1835008); srd(k, 44, 34, 1835008)
    k(f"""
    s_lshl_b32 s38, s2, 2
    s_add_u32 s38, s38, s20           ; W
    s_cmp_ge_u32 s38, 896
    s_cbranch_scc1 L_{L}_end
    s_cmp_ge_u32 s38, 448
    s_cselect_b32 s39, 448, 0
    s_cselect_b32 s48, 1792, 0
    s_cselect_b32 s40, s44, s40
    s_cselect_b32 s41, s45, s41
    s_sub_u32 s38, s38, s39           ; rem
    s_mul_i32 s39, s38, 9363
    s_lshr_b32 s39, s39, 16           ; rc
    s_mul_i32 s49, s39, 7
    s_sub_u32 s49, s38, s49           ; cb
    s_mul_i32 s50, s39, {8*3584}
    s_lshl_b32 s51, s49, 9
    s_add_u32 s50, s50, s51
    v_lshlrev_b32 v10, 3, v4
    """)
    for r in range(8):
        k(f"buffer_load_dwordx2 {vr(XF+2*r,2)}, v10, s[40:43], s50 offen")
        if r < 7: k(f"s_add_u32 s50, s50, 3584")
    k(f"""
    v_mov_b32 v12, 0x00003f80
    v_mov_b32 v13, 0x3f800000
    v_mov_b32 v16, 0
    v_mov_b32 v17, 0
    v_mov_b32 v18, 0
    v_mov_b32 v19, 0
    s_waitcnt vmcnt(0)
    """)
    for r in range(8):
        k(f"""
        v_dot2_f32_bf16 v16, v{XF+2*r}, v12, v16
        v_dot2_f32_bf16 v17, v{XF+2*r}, v13, v17
        v_dot2_f32_bf16 v18, v{XF+2*r+1}, v12, v18
        v_dot2_f32_bf16 v19, v{XF+2*r+1}, v13, v19
        """)
    k(f"""
    s_lshl_b32 s51, s49, 8
    s_add_u32 s51, s51, s48
    s_lshl_b32 s51, s51, 2
    s_add_u32 s51, s51, {WS_CS}
    v_lshlrev_b32 v10, 4, v4
    s_nop 2
    buffer_atomic_add_f32 v16, v10, s[16:19], s51 offen
    buffer_atomic_add_f32 v17, v10, s[16:19], s51 offen offset:4
    buffer_atomic_add_f32 v18, v10, s[16:19], s51 offen offset:8
    buffer_atomic_add_f32 v19, v10, s[16:19], s51 offen offset:12
    """)

def cfg64(K, KC, R, ldx, xbase, xsrd, ldw):
    c = G()
    c.WM, c.WN, c.MT, c.NT, c.NMAT, c.BN = 2, 2, 1, 1, 1, 64
    c.K, c.KC, c.R, c.ldx, c.xbase, c.xsrd, c.ldw, c.wsrd = K, KC, R, ldx, xbase, xsrd, ldw, ["s[12:15]"]
    c.vDX, c.vDW = 1, 2
    c.vXb, c.vXa, c.vWb, c.vWa = 16, 24, 32, 33
    c.FR = [36, 44]
    c.ACC = 64
    c.NPRE = 1
    return c

def map64(k):
    k("""
    s_and_b32 s21, s2, 7
    s_lshl_b32 s21, s21, 2
    s_lshr_b32 s22, s2, 6
    s_add_u32 s21, s21, s22
    s_lshl_b32 s21, s21, 6
    s_bfe_u32 s22, s2, 0x30003
    s_lshl_b32 s22, s22, 6
    """)

def gen_res(kind, KC=128, R=4):
    k3 = kind == 'k3'
    name = "wo_kernel" if k3 else "down_kernel"
    L = name
    if k3: c = cfg64(512, KC, R, 1024, WS_O, "s[16:19]", 1024)
    else: c = cfg64(1792, KC, R, 3584, WS_ACT, "s[16:19]", 1024)
    SB = 64 * KC * 2 * 2
    k = Kern(name, (256, 1, 1), (256, 1, 1), SB * R, 112)
    RES = 80; ACC = c.ACC; vSum, vSq, ONES = 8, 9, 15
    k(f"s_cmp_ge_u32 s2, 256\ns_cbranch_scc1 L_{L}_end")
    if k3:
        k("s_load_dwordx2 s[4:5], s[0:1], 0\ns_load_dwordx2 s[6:7], s[0:1], 32\ns_load_dwordx4 s[32:35], s[0:1], 48\ns_load_dwordx2 s[36:37], s[0:1], 88")
    else:
        k("s_load_dwordx4 s[4:7], s[0:1], 64\ns_load_dwordx2 s[36:37], s[0:1], 88")
    stamp(k, 0)
    lane_consts(k)
    map64(k)
    k("s_waitcnt lgkmcnt(0)")
    if k3:
        srd(k, 8, 4, 2097152); srd(k, 12, 6, 524288)
    else:
        srd(k, 12, 4, 1835008); srd(k, 8, 6, 2097152)
    srd(k, 16, 36, WS_SIZE)
    gemm_setup(k, c)
    for i in range(16): k(f"v_mov_b32 v{ACC+i}, 0")
    k(f"""
    s_lshl_b32 s31, s21, 10
    s_lshl_b32 s25, s22, 1
    s_add_u32 s31, s31, s25
    v_lshrrev_b32 v3, 3, v0
    v_and_b32 v6, 7, v0
    v_lshlrev_b32 v3, 10, v3
    v_lshl_add_u32 v3, v6, 4, v3
    """)
    def extra():
        if k3:
            k(f"s_add_u32 s25, s31, 32768\nbuffer_load_dwordx4 {vr(RES,4)}, v3, s[8:11], s31 offen\nbuffer_load_dwordx4 {vr(RES+4,4)}, v3, s[8:11], s25 offen")
        else:
            k(f"s_add_u32 s25, s31, {WS_H}\nbuffer_load_dwordx4 {vr(RES,4)}, v3, s[16:19], s25 offen")
            k(f"s_add_u32 s25, s31, {WS_H+32768}\nbuffer_load_dwordx4 {vr(RES+4,4)}, v3, s[16:19], s25 offen")
    gemm_main(k, c, extra, 2)
    RS = 272
    k(f"""
    s_barrier
    s_lshl_b32 s25, s23, 5
    v_add_u32 v10, s25, v5
    s_movk_i32 s25, {RS}
    v_mul_lo_u32 v10, v10, s25
    v_lshl_add_u32 v10, v7, 4, v10
    s_lshl_b32 s25, s24, 7
    v_add_u32 v10, s25, v10
    """)
    for g in range(4): k(f"ds_write_b128 v10, {vr(ACC+4*g,4)} offset:{32*g}")
    k(f"""
    v_lshrrev_b32 v10, 3, v0
    s_movk_i32 s25, {RS}
    v_mul_lo_u32 v10, v10, s25
    v_lshl_add_u32 v10, v6, 5, v10
    s_waitcnt lgkmcnt(0)
    s_barrier
    """)
    for p in range(2):
        k(f"ds_read_b128 {vr(ACC+8*p,4)}, v10 offset:{p*32*RS}\nds_read_b128 {vr(ACC+8*p+4,4)}, v10 offset:{p*32*RS+16}")
    k("s_waitcnt vmcnt(0) lgkmcnt(0)")
    for r in range(8):
        k(f"v_lshlrev_b32 v12, 16, v{RES+r}\nv_and_b32 v13, 0xffff0000, v{RES+r}")
        k(f"v_add_f32 v{ACC+2*r}, v{ACC+2*r}, v12\nv_add_f32 v{ACC+2*r+1}, v{ACC+2*r+1}, v13")
    for r in range(8): k(f"v_cvt_pk_bf16_f32 v{ACC+r}, v{ACC+2*r}, v{ACC+2*r+1}")
    if k3:
        k(f"s_add_u32 s25, s31, {WS_H}\nbuffer_store_dwordx4 {vr(ACC,4)}, v3, s[16:19], s25 offen")
        k(f"s_add_u32 s25, s31, {WS_H+32768}\nbuffer_store_dwordx4 {vr(ACC+4,4)}, v3, s[16:19], s25 offen")
        S = RES
        for i in range(4): k(f"v_mov_b32 v{S+i}, 0")
        k(f"v_mov_b32 v{ONES}, 0x3f803f80")
        for r in range(4):
            for p in range(2):
                k(f"v_dot2_f32_bf16 v{S+2*p}, v{ACC+4*p+r}, v{ONES}, v{S+2*p}\nv_dot2_f32_bf16 v{S+2*p+1}, v{ACC+4*p+r}, v{ACC+4*p+r}, v{S+2*p+1}")
        k("s_nop 2")
        for dpp in ("quad_perm:[1,0,3,2]", "quad_perm:[2,3,0,1]", "row_half_mirror"):
            for i in range(4): k(f"v_add_f32_dpp v{S+i}, v{S+i}, v{S+i} {dpp} row_mask:0xf bank_mask:0xf")
            k("s_nop 1")
        k(f"""
        v_lshrrev_b32 v10, 3, v0
        v_lshlrev_b32 v10, 3, v10         ; row*8
        s_lshl_b32 s38, s21, 3            ; row0*8
        s_lshl_b32 s39, s22, 8            ; cb*16384
        s_add_u32 s38, s38, s39
        s_add_u32 s38, s38, {WS_ST}
        buffer_store_dwordx2 {vr(S,2)}, v10, s[16:19], s38 offen
        buffer_store_dwordx2 {vr(S+2,2)}, v10, s[16:19], s38 offen offset:256
        """)
        stamp_out(k, 7, "s[16:19]", 4)
    else:
        k(f"buffer_store_dwordx4 {vr(ACC,4)}, v3, s[8:11], s31 offen")
        k(f"s_add_u32 s25, s31, 32768\nbuffer_store_dwordx4 {vr(ACC+4,4)}, v3, s[8:11], s25 offen")
        stamp_out(k, 7, "s[16:19]", 4)
    k.label(f"L_{L}_end")
    k("s_endpgm")
    return k

def gen_qkv(KC=64, R=5):
    name = "qkv_kernel"; L = name
    c = cfg64(512, KC, R, 1024, 0, "s[8:11]", 1024)
    k = Kern(name, (272, 1, 1), (256, 1, 1), 81920, 128)
    ACC = c.ACC; ACC1 = 80; ONES = 96; vS = 100
    k(f"s_cmp_ge_u32 s2, 272\ns_cbranch_scc1 L_{L}_end")
    k("s_load_dwordx4 s[4:7], s[0:1], 0\ns_load_dwordx4 s[32:35], s[0:1], 16\ns_load_dwordx2 s[36:37], s[0:1], 88")
    stamp(k, 0)
    lane_consts(k)
    k("s_waitcnt lgkmcnt(0)")
    srd(k, 8, 4, 2097152); srd(k, 12, 6, 524288); srd(k, 16, 36, WS_SIZE)
    for i in range(16): k(f"v_mov_b32 v{ACC+i}, 0\nv_mov_b32 v{ACC1+i}, 0")
    for i in range(4): k(f"v_mov_b32 v{ONES+i}, 0x3f803f80")
    for i in range(8): k(f"v_mov_b32 v{vS+i}, 0")
    def hook(b):
        k(f"v_mfma_f32_32x32x16_bf16 {vr(ACC1,16)}, {vr(b+4,4)}, {vr(ONES,4)}, {vr(ACC1,16)}")
        U = 108
        for r in range(4):
            k(f"v_lshlrev_b32 v{U+2*r}, 16, v{b+r}\nv_and_b32 v{U+2*r+1}, 0xffff0000, v{b+r}")
        for r in range(4):
            a = vS + 2 * (r & 1)
            k(f"v_pk_add_f32 {vr(a,2)}, {vr(a,2)}, {vr(U+2*r,2)}")
            k(f"v_pk_fma_f32 {vr(a+4,2)}, {vr(U+2*r,2)}, {vr(U+2*r,2)}, {vr(a+4,2)}")
    def ln_stats(scale):
        k(f"""
        v_add_f32 v{vS}, v{vS}, v{vS+1}
        v_add_f32 v{vS+2}, v{vS+2}, v{vS+3}
        v_add_f32 v{vS+4}, v{vS+4}, v{vS+5}
        v_add_f32 v{vS+6}, v{vS+6}, v{vS+7}
        v_add_f32 v{vS}, v{vS}, v{vS+2}
        v_add_f32 v{vS+1}, v{vS+4}, v{vS+6}
        """)
        half_sum(k, [vS, vS+1], [12, 13])
        k(f"""
        v_mul_f32 v12, {fhex(-1.0/512)}, v{vS}
        v_mul_f32 v13, {fhex(1.0/512)}, v{vS+1}
        v_fma_f32 v13, -v12, v12, v13
        v_max_f32 v13, 0, v13
        v_add_f32 v13, {fhex(1e-5)}, v13
        v_rsq_f32 v13, v13
        s_nop 0
        v_mul_f32 v13, {fhex(scale)}, v13
        """)
        for r in range(16):
            k(f"v_fma_f32 v{ACC+r}, v12, v{ACC1+r}, v{ACC+r}\nv_mul_f32 v{ACC+r}, v{ACC+r}, v13")
        for r in range(8): k(f"v_cvt_pk_bf16_f32 v{ACC+r}, v{ACC+2*r}, v{ACC+2*r+1}")
    k(f"s_cmp_ge_u32 s2, 256\ns_cbranch_scc1 L_{L}_kv")
    map64(k)
    gemm_setup(k, c)
    gemm_main(k, c, kstep_hook=hook)
    ln_stats(QSCALE)
    RS = 144
    k(f"""
    s_barrier
    s_lshl_b32 s25, s23, 5
    v_add_u32 v10, s25, v5
    s_movk_i32 s25, {RS}
    v_mul_lo_u32 v10, v10, s25
    v_lshl_add_u32 v10, v7, 3, v10
    s_lshl_b32 s25, s24, 6
    v_add_u32 v10, s25, v10
    """)
    for g in range(4): k(f"ds_write_b64 v10, {vr(ACC+2*g,2)} offset:{16*g}")
    k(f"""
    v_lshrrev_b32 v3, 3, v0
    v_and_b32 v6, 7, v0
    s_movk_i32 s25, {RS}
    v_mul_lo_u32 v10, v3, s25
    v_lshl_add_u32 v10, v6, 4, v10
    v_lshlrev_b32 v3, 10, v3
    v_lshl_add_u32 v3, v6, 4, v3
    s_lshl_b32 s31, s21, 10
    s_lshl_b32 s25, s22, 1
    s_add_u32 s31, s31, s25
    s_add_u32 s25, s31, 32768
    s_waitcnt lgkmcnt(0)
    s_barrier
    ds_read_b128 {vr(ACC,4)}, v10
    ds_read_b128 {vr(ACC+4,4)}, v10 offset:{32*RS}
    s_waitcnt lgkmcnt(1)
    buffer_store_dwordx4 {vr(ACC,4)}, v3, s[16:19], s31 offen
    s_waitcnt lgkmcnt(0)
    buffer_store_dwordx4 {vr(ACC+4,4)}, v3, s[16:19], s25 offen
    """)
    stamp_out(k, 7, "s[16:19]", 4)
    k(f"s_branch L_{L}_end")
    k.label(f"L_{L}_kv")
    srd(k, 40, 32, 16384); srd(k, 44, 34, 16384)
    KC2 = 64; R2 = 3; RX = 128; XB = 128 * RX; WB = KC2 * 32; VO = WB + 128; SB = XB + 2 * WB + 256; NST = 8
    assert SB * R2 <= 81920
    vDX, vDW, vXb, vXa, vWb, vWa = 1, 2, 16, 24, 32, 33
    k(f"""
    s_sub_u32 s21, s2, 256
    s_lshl_b32 s21, s21, 7
    v_lshrrev_b32 v10, 3, v4
    v_and_b32 v11, 7, v4
    v_lshrrev_b32 v12, 4, v4
    s_lshl_b32 s25, s20, 2
    v_add_u32 v12, s25, v12
    v_and_b32 v12, 7, v12
    v_xor_b32 v11, v11, v12
    v_lshlrev_b32 v10, 10, v10
    v_lshl_add_u32 v{vDX}, v11, 4, v10
    v_lshlrev_b32 v{vDW}, 4, v4
    s_lshl_b32 s25, s20, 3
    s_add_u32 s25, s25, s21
    s_lshl_b32 s26, s25, 10
    s_lshl_b32 s28, s20, 10
    v_bfe_u32 v10, v5, 1, 3
    v_xor_b32 v10, v10, v7
    v_lshlrev_b32 v10, 4, v10
    v_lshl_add_u32 v10, v5, 7, v10
    s_lshl_b32 s25, s20, 12           ; w*32 rows*128
    """)
    for ks in range(4): k(f"v_xor_b32 v{vXb+ks}, {32*ks}, v10\nv_add_u32 v{vXb+ks}, s25, v{vXb+ks}")
    k(f"""
    v_bfe_u32 v10, v0, 2, 2
    v_lshl_add_u32 v11, v7, 3, v10
    v_lshlrev_b32 v11, 5, v11         ; row*32
    v_and_b32 v12, 3, v0
    v_lshl_add_u32 v11, v12, 3, v11   ; + (i&3)*8
    v_bfe_u32 v12, v0, 4, 1
    s_movk_i32 s31, {VO}
    v_mad_u32_u24 v{vWb}, v12, s31, v11
    v_add_u32 v{vWb}, {XB}, v{vWb}
    s_cmp_lt_u32 s20, 2
    s_cselect_b32 s40, s40, s44
    s_cselect_b32 s41, s41, s45
    s_and_b32 s29, s20, 1
    s_lshl_b32 s29, s29, 10
    s_lshr_b32 s30, s20, 1
    s_mul_i32 s30, s30, {VO}
    s_add_u32 s30, s30, s29
    """)
    def kvdma(st):
        slot = (st % R2) * SB
        for j in range(4):
            k(f"""
            s_add_u32 s38, s28, {slot + j*4096}
            s_mov_b32 m0, s38
            s_add_u32 s39, s26, {j*32*1024 + st*KC2*2}
            buffer_load_dwordx4 v{vDX}, s[8:11], s39 offen lds
            """)
        k(f"""
        s_add_u32 s38, s30, {slot + XB}
        s_mov_b32 m0, s38
        s_add_u32 s39, s29, {st*WB}
        buffer_load_dwordx4 v{vDW}, s[40:43], s39 offen lds
        """)
    issued = 0
    for st in range(R2): kvdma(st); issued += 1
    FR = c.FR
    for st in range(NST):
        k(f"s_waitcnt vmcnt({(issued - st - 1) * 5})\ns_barrier")
        if issued < NST and st > 0: kvdma(issued); issued += 1
        slot = (st % R2) * SB
        for ks in range(4): k(f"v_add_u32 v{vXa+ks}, {slot}, v{vXb+ks}")
        k(f"v_add_u32 v{vWa}, {slot}, v{vWb}")
        def rd(ks):
            b = FR[ks % 2]
            k(f"ds_read_b128 {vr(b,4)}, v{vXa+ks}")
            k(f"ds_read_b64_tr_b16 {vr(b+4,2)}, v{vWa} offset:{ks*512}")
            k(f"ds_read_b64_tr_b16 {vr(b+6,2)}, v{vWa} offset:{ks*512+128}")
        rd(0)
        for ks in range(4):
            if ks < 3: rd(ks+1); k("s_waitcnt lgkmcnt(3)")
            else: k("s_waitcnt lgkmcnt(0)")
            b = FR[ks % 2]
            k(f"v_mfma_f32_32x32x16_bf16 {vr(ACC,16)}, {vr(b+4,4)}, {vr(b,4)}, {vr(ACC,16)}")
            hook(b)
    k("s_nop 15")
    ln_stats(1.0)
    vSq = vS
    k(f"""
    s_lshl_b32 s25, s20, 5
    s_add_u32 s25, s25, s21
    v_lshlrev_b32 v10, 4, v5
    v_lshl_add_u32 v10, v7, 3, v10
    s_lshl_b32 s38, s25, 5            ; tile*1024
    s_add_u32 s39, s38, {WS_K}
    buffer_store_dwordx2 {vr(ACC,2)}, v10, s[16:19], s39 offen
    buffer_store_dwordx2 {vr(ACC+2,2)}, v10, s[16:19], s39 offen offset:512
    v_mov_b32 v{vSq}, 0
    """)
    for r in range(4): k(f"v_dot2_f32_bf16 v{vSq}, v{ACC+r}, v{ACC+r}, v{vSq}")
    k(f"""
    v_and_b32 v11, 19, v5             ; 16i + (kk&3)
    v_bfe_u32 v12, v5, 2, 1
    v_lshl_add_u32 v11, v12, 3, v11
    v_bfe_u32 v12, v5, 3, 1
    v_lshl_add_u32 v11, v12, 2, v11   ; pos
    v_lshlrev_b32 v11, 1, v11
    v_lshl_add_u32 v11, v7, 14, v11   ; + 4h*4096
    s_lshl_b32 s38, s25, 1
    s_add_u32 s39, s38, {WS_VT}
    v_mov_b32 v31, v{vSq}
    """)
    for r in range(4):
        d0 = (r & 1) * 2 + (r >> 1) * 8
        k(f"s_add_u32 s38, s39, {d0*4096}")
        k(f"buffer_store_short v{ACC+4+r}, v11, s[16:19], s38 offen")
        k(f"s_add_u32 s38, s39, {(d0+1)*4096}")
        k(f"buffer_store_short_d16_hi v{ACC+4+r}, v11, s[16:19], s38 offen")
    k(f"""
    v_permlane32_swap_b32 v{vSq}, v31
    s_nop 1
    v_add_f32 v{vSq}, v{vSq}, v31
    s_nop 1
    v_max_f32_dpp v{vSq}, v{vSq}, v{vSq} quad_perm:[1,0,3,2] row_mask:0xf bank_mask:0xf
    s_nop 1
    v_max_f32_dpp v{vSq}, v{vSq}, v{vSq} quad_perm:[2,3,0,1] row_mask:0xf bank_mask:0xf
    s_nop 1
    v_max_f32_dpp v{vSq}, v{vSq}, v{vSq} row_ror:4 row_mask:0xf bank_mask:0xf
    s_nop 1
    v_max_f32_dpp v{vSq}, v{vSq}, v{vSq} row_ror:8 row_mask:0xf bank_mask:0xf
    s_nop 1
    v_mov_b32 v31, v{vSq}
    s_nop 1
    v_permlane16_swap_b32 v{vSq}, v31
    s_nop 1
    v_max_f32 v{vSq}, v{vSq}, v31
    s_lshr_b32 s38, s25, 3            ; tile*4
    s_add_u32 s38, s38, {WS_KN}
    v_mov_b32 v10, 0
    buffer_store_dword v{vSq}, v10, s[16:19], s38 offen
    s_cmp_lg_u32 s25, 0
    s_cbranch_scc1 L_{L}_end
    v_mov_b32 v16, 0
    v_mov_b32 v17, 0
    v_mov_b32 v18, 0
    v_mov_b32 v19, 0
    s_mov_b32 s38, {WS_CS}
    """)
    for i in range(14):
        k(f"buffer_store_dwordx4 v[16:19], v{vDW}, s[16:19], s38 offen\ns_add_u32 s38, s38, 1024")
    k.label(f"L_{L}_end")
    k("s_endpgm")
    return k

def gen_ffn(KC=64, R=3):
    name = "ffn_kernel"; L = name
    c = G()
    c.WM, c.WN, c.MT, c.NT, c.NMAT, c.BN = 2, 4, 2, 1, 2, 128
    c.K, c.KC, c.R, c.ldx, c.xbase, c.xsrd, c.ldw, c.wsrd = 512, KC, R, 1024, WS_H, "s[16:19]", 3584, ["s[8:11]", "s[12:15]"]
    c.vDX, c.vDW = 1, 2
    c.vXb, c.vXa, c.vWb, c.vWa = 16, 24, 32, 33
    c.FR = [36, 52]
    c.ACC = 68 + 0
    c.ACC = 72
    c.NPRE = 1
    SB = 128 * KC * 2 + 2 * KC * 256
    k = Kern(name, (224, 1, 1), (512, 1, 1), SB * R, 232)
    ST = 136
    CS = 200
    k(f"s_cmp_ge_u32 s2, 224\ns_cbranch_scc1 L_{L}_end")
    k("s_load_dwordx4 s[4:7], s[0:1], 48\ns_load_dwordx2 s[36:37], s[0:1], 88")
    stamp(k, 0)
    lane_consts(k)
    k("s_waitcnt lgkmcnt(0)")
    srd(k, 8, 4, 1835008); srd(k, 12, 6, 1835008); srd(k, 16, 36, WS_SIZE)
    k("s_and_b32 s21, s2, 7\ns_mul_i32 s21, s21, 28\ns_lshr_b32 s22, s2, 3\ns_add_u32 s21, s21, s22\ns_lshr_b32 s22, s21, 4\ns_and_b32 s21, s21, 15\ns_lshl_b32 s21, s21, 7\ns_lshl_b32 s22, s22, 7")
    gemm_setup(k, c)
    for i in range(64): k(f"v_mov_b32 v{c.ACC+i}, 0")
    k(f"""
    s_lshl_b32 s29, s23, 6
    s_add_u32 s29, s29, s21
    s_lshl_b32 s30, s24, 5
    s_add_u32 s30, s30, s22           ; wave n0
    """)
    def extra():
        k(f"""
        v_lshlrev_b32 v3, 3, v5
        v_lshl_add_u32 v3, v7, 16, v3     ; m*8 + h*4*16384
        s_lshl_b32 s25, s29, 3
        s_add_u32 s25, s25, {WS_ST}
        """)
        for j in range(4):
            for mt in range(2):
                k(f"buffer_load_dwordx2 {vr(ST+8*mt+2*j,2)}, v3, s[16:19], s25 offen offset:{256*mt}")
            if j < 3: k("s_add_u32 s25, s25, 16384")
        k(f"""
        v_lshlrev_b32 v3, 4, v7
        s_lshl_b32 s25, s30, 2
        s_add_u32 s25, s25, {WS_CS}
        """)
        for mat in range(2):
            for g in range(4):
                k(f"buffer_load_dwordx4 {vr(CS+16*mat+4*g,4)}, v3, s[16:19], s25 offen offset:{32*g}")
            if mat == 0: k(f"s_add_u32 s25, s25, {1792*4}")
    gemm_main(k, c, extra, 16)
    k("s_waitcnt vmcnt(0)")
    GA = -2.0 * 0.7978845608028654 * 1.4426950408889634
    k(f"v_mov_b32 v15, {fhex(GA)}\ns_mov_b32 s41, {fhex(GA*0.044715)}")
    RS = 272
    k(f"""
    s_barrier
    s_lshl_b32 s25, s23, 6
    v_add_u32 v10, s25, v5
    s_movk_i32 s25, {RS}
    v_mul_lo_u32 v10, v10, s25
    v_lshl_add_u32 v10, v7, 3, v10
    s_lshl_b32 s25, s24, 6
    v_add_u32 v10, s25, v10
    """)
    for mt in range(2):
        b = ST + 8 * mt
        for j in range(1, 4): k(f"v_add_f32 v{b}, v{b}, v{b+2*j}\nv_add_f32 v{b+1}, v{b+1}, v{b+2*j+1}")
        half_sum(k, [b, b+1], [12, 13])
        k(f"""
        v_mul_f32 v12, {fhex(-1.0/512)}, v{b}
        v_mul_f32 v13, {fhex(1.0/512)}, v{b+1}
        v_fma_f32 v13, -v12, v12, v13
        v_max_f32 v13, 0, v13
        v_add_f32 v13, {fhex(1e-5)}, v13
        v_rsq_f32 v13, v13
        s_nop 0
        """)
        g0 = c.ACC + 16 * mt; u0 = c.ACC + 32 + 16 * mt
        T = c.FR[0]
        for r0 in range(0, 16, 8):
            rr = range(r0, r0 + 8)
            for r in rr: k(f"v_fma_f32 v{g0+r}, v12, v{CS+r}, v{g0+r}")
            for r in rr: k(f"v_mul_f32 v{g0+r}, v{g0+r}, v13")
            for r in rr: k(f"v_fma_f32 v{u0+r}, v12, v{CS+16+r}, v{u0+r}")
            for r in rr: k(f"v_mul_f32 v{T+r-r0}, v{g0+r}, v{g0+r}")
            for r in rr: k(f"v_mul_f32 v{u0+r}, v{u0+r}, v13")
            for r in rr: k(f"v_fma_f32 v{T+r-r0}, v{T+r-r0}, s41, v15")
            for r in rr: k(f"v_mul_f32 v{u0+r}, v{u0+r}, v{g0+r}")
            for r in rr: k(f"v_mul_f32 v{T+r-r0}, v{T+r-r0}, v{g0+r}")
            for r in rr: k(f"v_exp_f32 v{T+r-r0}, v{T+r-r0}")
            for r in rr: k(f"v_add_f32 v{T+r-r0}, 1.0, v{T+r-r0}")
            for r in rr: k(f"v_rcp_f32 v{T+r-r0}, v{T+r-r0}")
            for r in rr: k(f"v_mul_f32 v{u0+r}, v{u0+r}, v{T+r-r0}")
        for r in range(8): k(f"v_cvt_pk_bf16_f32 v{u0+r}, v{u0+2*r}, v{u0+2*r+1}")
        for g in range(4): k(f"ds_write_b64 v10, {vr(u0+2*g,2)} offset:{mt*32*RS + 16*g}")
    k(f"""
    v_lshrrev_b32 v3, 4, v0
    v_and_b32 v6, 15, v0
    s_movk_i32 s25, {RS}
    v_mul_lo_u32 v10, v3, s25
    v_lshl_add_u32 v10, v6, 4, v10
    s_movk_i32 s25, 3584
    v_mul_lo_u32 v3, v3, s25
    v_lshl_add_u32 v3, v6, 4, v3
    s_mul_i32 s31, s21, 3584
    s_lshl_b32 s25, s22, 1
    s_add_u32 s31, s31, s25
    s_add_u32 s31, s31, {WS_ACT}
    s_waitcnt lgkmcnt(0)
    s_barrier
    """)
    for p in range(4): k(f"ds_read_b128 {vr(c.ACC+4*p,4)}, v10 offset:{p*32*RS}")
    for p in range(4):
        k(f"s_waitcnt lgkmcnt({3-p})\nbuffer_store_dwordx4 {vr(c.ACC+4*p,4)}, v3, s[16:19], s31 offen")
        if p < 3: k(f"s_add_u32 s31, s31, {32*3584}")
    stamp_out(k, 7, "s[16:19]", 8)
    k.label(f"L_{L}_end")
    k("s_endpgm")
    return k

def emit(kerns, path):
    hdr = open(f"cdna_kernels/{NAME}.s.ref").read().split("; Override launch")[0]
    s = hdr
    for k in kerns:
        s += f"; @launch kernel={k.name} grid=({k.grid[0]},{k.grid[1]},{k.grid[2]}) block=({k.block[0]},{k.block[1]},{k.block[2]}) lds={k.lds}\n"
    s += '.amdgcn_target "amdgcn-amd-amdhsa--gfx950"\n.text\n'
    for k in kerns: s += k.text()
    s += '.section .rodata,"a"\n'
    for k in kerns: s += k.desc()
    open(path, "w").write(s)

if __name__ == "__main__":
    if len(sys.argv) > 1 and sys.argv[1] == "stamp":
        STAMP = True
        emit([gen_qkv(), gen_attn(), gen_res("k3"), gen_ffn(), gen_res("k5")], "full_stamp.s")
        sys.exit(0)
    emit([gen_qkv(), gen_attn(), gen_res("k3"), gen_ffn(), gen_res("k5")], "full.s")
```

```python
import sys
NAME = "sequential_preLN__grouped_kv_mqa__glu_gated_geglu__prompt"
WS_Q, WS_K, WS_VT, WS_KN, WS_CS, WS_ST, WS_O, WS_H, WS_ACT = 0, 0x200000, 0x210000, 0x220000, 0x221000, 0x230000, 0x300000, 0x500000, 0x800000
WS_SIZE = 268435456
WS_G, WS_CSQ, WS_XST = 0x1400000, 0x226000, 0x228000

class Kern:
    def __init__(self, name, grid, block, lds, nvgpr, nsgpr=100):
        self.name, self.grid, self.block, self.lds, self.nvgpr, self.nsgpr = name, grid, block, lds, nvgpr, nsgpr
        self.L = []
    def __call__(self, s):
        for line in s.split("\n"):
            line = line.strip()
            if line: self.L.append("    " + line)
    def label(self, s): self.L.append(s + ":")
    def text(self):
        return f".globl {self.name}\n.p2align 8\n.type {self.name},@function\n{self.name}:\n" + "\n".join(self.L) + "\n"
    def desc(self):
        nv = (self.nvgpr + 3) // 4 * 4
        return f""".p2align 6
.amdhsa_kernel {self.name}
  .amdhsa_next_free_vgpr {nv}
  .amdhsa_next_free_sgpr {self.nsgpr}
  .amdhsa_accum_offset {nv}
  .amdhsa_group_segment_fixed_size 0
  .amdhsa_kernarg_size 96
  .amdhsa_user_sgpr_count 2
  .amdhsa_user_sgpr_kernarg_segment_ptr 1
  .amdhsa_system_sgpr_workgroup_id_x 1
.end_amdhsa_kernel
"""
STAMP = False
AV = int(__import__('os').environ.get('AV', '1'))
FFNMAP = int(__import__('os').environ.get('FFNMAP', '0'))
SB0 = 70
def stamp(k, i):
    if STAMP: k(f"s_memtime s[{SB0+2*i}:{SB0+1+2*i}]")
def stamp_out(k, n, wsrd, nwaves, base=0x1000000):
    if not STAMP: return
    k("s_waitcnt vmcnt(0) lgkmcnt(0)")
    k(f"s_memtime s[{SB0+2*n}:{SB0+1+2*n}]\ns_waitcnt lgkmcnt(0)")
    k(f"s_mul_i32 s58, s2, {nwaves}\ns_add_u32 s58, s58, s20\ns_lshl_b32 s58, s58, 6\ns_add_u32 s58, s58, {base}\nv_mov_b32 v1, 0")
    for i in range(1, n+1):
        k(f"s_sub_u32 s59, s{SB0+2*i}, s{SB0}\nv_mov_b32 v2, s59\nbuffer_store_dword v2, v1, {wsrd}, s58 offen offset:{4*(i-1)}")
def vr(b, n): return f"v[{b}:{b+n-1}]"

def srd(k, d, ptr_s, size):
    k(f"s_mov_b32 s{d}, s{ptr_s}\ns_mov_b32 s{d+1}, s{ptr_s+1}\ns_mov_b32 s{d+2}, {size}\ns_mov_b32 s{d+3}, 0x00020000")

def gen_attn():
    VBASE = 65536; VRS = 4112; CBASE = VBASE + 17 * VRS
    CBASE = (CBASE + 15) // 16 * 16
    FLAG = CBASE + 4 * 4608
    LDS = FLAG + 64
    k = Kern("attn_kernel", (256, 1, 1), (512, 1, 1), LDS, 180)
    QA, QB = 8, 12; KF = [16, 20]; VF = [24, 32]; PA, PB = 40, 48
    CA, CB = 64, 80; SA, SB = 96, 112; OA, OB = 128, 144
    vL16, vK, vV = 1, 2, 3
    k(f"""
    s_cmp_ge_u32 s2, 256
    s_cbranch_scc1 L_attn_end
    s_load_dwordx2 s[4:5], s[0:1], 88
    s_load_dwordx4 s[32:35], s[0:1], 48
    s_load_dwordx2 s[60:61], s[0:1], 32
    s_load_dwordx2 s[62:63], s[0:1], 64
    """)
    stamp(k, 0)
    k(f"""
    v_and_b32 v4, 63, v0
    v_lshrrev_b32 v5, 6, v0
    v_lshlrev_b32 v{vL16}, 4, v4
    v_readfirstlane_b32 s20, v5
    v_and_b32 v6, 31, v0
    v_lshlrev_b32 v6, 5, v6
    v_bfe_u32 v7, v0, 5, 1
    v_lshl_or_b32 v6, v7, 4, v6       ; (l&31)*32 + h*16
    v_lshlrev_b32 v57, 2, v4
    s_waitcnt lgkmcnt(0)
    """)
    srd(k, 8, 4, WS_SIZE)
    k(f"""
    s_and_b32 s21, s20, 3
    s_lshr_b32 s22, s20, 2
    s_lshl_b32 s24, s2, 13
    s_lshl_b32 s23, s21, 11
    s_add_u32 s24, s24, s23
    s_mov_b32 s53, 0                  ; pass
    s_mov_b32 s52, 0
    s_mul_i32 s26, s21, 4608
    s_add_u32 s26, s26, {CBASE}
    v_add_u32 v59, s26, v{vL16}
    s_lshl_b32 s25, s21, 12           ; rb*4096
    s_mul_i32 s28, s21, {4*VRS}
    s_lshl_b32 s29, s21, 14
    s_cmp_eq_u32 s22, 0
    s_cbranch_scc1 L_attn_roleD
    s_mov_b32 s25, {WS_KN}
    s_lshl_b32 s26, s24, 1
    s_add_u32 s26, s26, {WS_G}
    s_mov_b32 s27, {WS_CSQ}
    v_lshlrev_b32 v58, 1, v6          ; (l&31)*64 + h*32
    s_lshr_b32 s28, s24, 7
    s_add_u32 s28, s28, {WS_XST}
    s_add_u32 s4, s4, s28
    s_addc_u32 s5, s5, 0
    s_load_dwordx4 s[64:67], s[4:5], 0
    buffer_load_dwordx4 {vr(SA,4)}, v58, s[8:11], s26 offen
    buffer_load_dwordx4 {vr(SA+4,4)}, v58, s[8:11], s26 offen offset:16
    buffer_load_dwordx4 {vr(SA+8,4)}, v58, s[8:11], s26 offen offset:2048
    buffer_load_dwordx4 {vr(SA+12,4)}, v58, s[8:11], s26 offen offset:2064
    buffer_load_dwordx4 {vr(SB,4)}, v58, s[8:11], s27 offen
    buffer_load_dwordx4 {vr(SB+4,4)}, v58, s[8:11], s27 offen offset:16
    buffer_load_dword v56, v57, s[8:11], s25 offen
    v_and_b32 v5, 255, v0
    v_lshlrev_b32 v5, 4, v5
    v_mov_b32 v60, 0x3f803f80
    v_mov_b32 v61, 0x3f803f80
    v_mov_b32 v62, 0x3f803f80
    v_mov_b32 v63, 0x3f803f80
    v_add_u32 v5, {VBASE + 16*VRS}, v5
    ds_write_b128 v5, v[60:63]
    v_mov_b32 v5, {FLAG}
    v_mov_b32 v60, 0
    ds_write_b32 v5, v60
    s_waitcnt vmcnt(0) lgkmcnt(0)
    v_mov_b32 v58, {fhex(QSCALE)}
    v_mul_f32 v60, s67, v58
    v_mul_f32 v58, s65, v58
    """)
    for i in range(8):
        k(f"v_fma_f32 v{SA+i}, s64, v{SB+i}, v{SA+i}\nv_fma_f32 v{SA+8+i}, s66, v{SB+i}, v{SA+8+i}")
    for i in range(8):
        k(f"v_mul_f32 v{SA+i}, v{SA+i}, v58\nv_mul_f32 v{SA+8+i}, v{SA+8+i}, v60")
    for i in range(4):
        k(f"v_cvt_pk_bf16_f32 v{QA+i}, v{SA+2*i}, v{SA+2*i+1}\nv_cvt_pk_bf16_f32 v{QB+i}, v{SA+8+2*i}, v{SA+8+2*i+1}")
    k(f"""
    v_max_f32_dpp v56, v56, v56 quad_perm:[1,0,3,2] row_mask:0xf bank_mask:0xf
    v_mov_b32 v4, 0
    v_mov_b32 v5, 0
    v_max_f32_dpp v56, v56, v56 quad_perm:[2,3,0,1] row_mask:0xf bank_mask:0xf
    ds_write_b128 v59, {vr(QA,4)}
    ds_write_b128 v59, {vr(QB,4)} offset:1024
    v_dot2_f32_bf16 v4, v{QA}, v{QA}, v4
    v_dot2_f32_bf16 v5, v{QB}, v{QB}, v5
    v_max_f32_dpp v56, v56, v56 row_ror:4 row_mask:0xf bank_mask:0xf
    v_dot2_f32_bf16 v4, v{QA+1}, v{QA+1}, v4
    v_dot2_f32_bf16 v5, v{QB+1}, v{QB+1}, v5
    v_max_f32_dpp v56, v56, v56 row_ror:8 row_mask:0xf bank_mask:0xf
    v_dot2_f32_bf16 v4, v{QA+2}, v{QA+2}, v4
    v_dot2_f32_bf16 v5, v{QB+2}, v{QB+2}, v5
    v_mov_b32 v57, v56
    v_dot2_f32_bf16 v4, v{QA+3}, v{QA+3}, v4
    v_dot2_f32_bf16 v5, v{QB+3}, v{QB+3}, v5
    s_nop 1
    v_permlane16_swap_b32 v56, v57
    s_nop 1
    v_max_f32 v56, v56, v57
    v_mov_b32 v58, v4
    v_mov_b32 v57, v56
    v_mov_b32 v60, v5
    s_nop 1
    v_permlane32_swap_b32 v56, v57
    v_permlane32_swap_b32 v4, v58
    v_permlane32_swap_b32 v5, v60
    s_nop 1
    v_max_f32 v56, v56, v57
    v_add_f32 v4, v4, v58
    v_add_f32 v5, v5, v60
    v_mul_f32 v4, v4, v56
    v_mul_f32 v5, v5, v56
    v_sqrt_f32 v4, v4
    v_sqrt_f32 v5, v5
    s_nop 0
    ds_write_b64 v59, v[4:5] offset:2048
    s_waitcnt lgkmcnt(0)
    s_barrier
    """)
    stamp(k, 1)
    k("s_branch L_attn_pass")
    k.label("L_attn_roleD")
    XF = 160
    def kvdma(ph):
        for hh in range(2):
            for j in range(4):
                k(f"""
                s_add_u32 s26, s25, {hh*32768 + ph*16384 + j*1024}
                s_mov_b32 m0, s26
                s_add_u32 s27, s26, {WS_K}
                buffer_load_dwordx4 v{vL16}, s[8:11], s27 offen lds
                """)
        for d in range(4):
            for c in (ph, 2 + ph):
                k(f"""
                s_add_u32 s26, s28, {VBASE + d*VRS + c*1024}
                s_mov_b32 m0, s26
                s_add_u32 s27, s29, {WS_VT + d*4096 + c*1024}
                buffer_load_dwordx4 v{vL16}, s[8:11], s27 offen lds
                """)
    kvdma(0)
    k("s_waitcnt vmcnt(0)\ns_barrier")
    stamp(k, 1)
    k(f"""
    ds_read_b128 {vr(QA,4)}, v59
    ds_read_b128 {vr(QB,4)}, v59 offset:1024
    ds_read_b64 v[4:5], v59 offset:2048
    """)
    kvdma(1)
    k("s_waitcnt lgkmcnt(0)")
    srd(k, 40, 60, 524288); srd(k, 44, 62, 1835008)
    k(f"""
    s_lshl_b32 s38, s2, 2
    s_add_u32 s38, s38, s21           ; W
    s_lshl_b32 s39, s38, 9
    s_mul_i32 s50, s38, 1792
    buffer_load_dwordx4 v[176:179], v{vL16}, s[40:43], s39 offen
    buffer_load_dwordx4 v[176:179], v{vL16}, s[44:47], s50 offen
    buffer_load_dwordx4 v[176:179], v{vL16}, s[44:47], s50 offen offset:1024
    """)
    srd(k, 40, 32, 1835008); srd(k, 44, 34, 1835008)
    k(f"""
    s_cmp_ge_u32 s38, 896
    s_cbranch_scc1 L_attn_pass
    s_mov_b32 s52, 1
    s_cmp_ge_u32 s38, 448
    s_cselect_b32 s39, 448, 0
    s_cselect_b32 s48, 1792, 0
    s_cselect_b32 s40, s44, s40
    s_cselect_b32 s41, s45, s41
    s_sub_u32 s38, s38, s39           ; rem
    s_mul_i32 s39, s38, 9363
    s_lshr_b32 s39, s39, 16           ; rc
    s_mul_i32 s49, s39, 7
    s_sub_u32 s49, s38, s49           ; cb
    s_mul_i32 s50, s39, {8*3584}
    s_lshl_b32 s51, s49, 9
    s_add_u32 s50, s50, s51
    v_lshrrev_b32 v58, 1, v{vL16}
    """)
    for r in range(8):
        k(f"buffer_load_dwordx2 {vr(XF+2*r,2)}, v58, s[40:43], s50 offen")
        if r < 7: k(f"s_add_u32 s50, s50, 3584")
    k.label("L_attn_pass")
    if AV in (1, 4, 5): k("s_cmp_eq_u32 s22, 0\ns_cbranch_scc1 L_attn_np\ns_setprio 1"); k.label("L_attn_np")
    k(f"""
    s_lshl_b32 s26, s22, 15
    v_add_u32 v{vK}, s26, v{vL16}
    v_and_b32 v58, 31, v0
    v_min_u32 v58, 16, v58
    s_movk_i32 s27, {VRS}
    v_mul_lo_u32 v58, v58, s27
    v_lshl_add_u32 v58, v7, 4, v58
    s_lshl_b32 s26, s22, 11
    s_add_u32 s26, s26, {VBASE}
    v_add_u32 v{vV}, s26, v58
    ds_read_b128 {vr(KF[0],4)}, v{vK}
    ds_read_b128 {vr(KF[1],4)}, v{vK} offset:1024
    ds_read_b128 {vr(VF[0],4)}, v{vV}
    ds_read_b128 {vr(VF[0]+4,4)}, v{vV} offset:32
    """)
    for i in range(16): k(f"v_sub_f32 v{CA+i}, 0, v4\nv_sub_f32 v{CB+i}, 0, v5")
    for i in range(16): k(f"v_mov_b32 v{OA+i}, 0\nv_mov_b32 v{OB+i}, 0")
    for i in range(4): k(f"v_mov_b32 v{PB+4+i}, 0\nv_mov_b32 v{VF[1]+4+i}, 0")
    k(f"""
    s_waitcnt lgkmcnt(3)
    v_mfma_f32_32x32x16_bf16 {vr(SA,16)}, {vr(KF[0],4)}, {vr(QA,4)}, {vr(CA,16)}
    s_mov_b32 s30, 16
    s_nop 9
    """)
    def MF(D, A, B, C): k(f"v_mfma_f32_32x32x16_bf16 {vr(D,16)}, {vr(A,4)}, {vr(B,4)}, {vr(C,16)}")
    def unit(S, P, O, vf, prevPV2, nextQK, rdV=None, rdK=None):
        def E(a, b):
            for i in range(a, b): k(f"v_exp_f32 v{S+i}, v{S+i}")
        def C(a, b):
            for i in range(a, b): k(f"v_cvt_pk_bf16_f32 v{P+i}, v{S+2*i}, v{S+2*i+1}")
        if AV in (0, 1, 4, 5, 6, 7):
            E(0, 4); MF(*prevPV2)
            if rdV and AV != 4: k(rdV)
            E(4, 8); C(0, 4); MF(*nextQK)
            if rdK and AV != 4: k(rdK)
            E(8, 12); MF(O, vf, P, O); E(12, 16); C(4, 8)
        elif AV == 2:
            E(0, 5); MF(*prevPV2)
            if rdV: k(rdV)
            E(5, 8); C(0, 2); E(8, 10); MF(*nextQK)
            if rdK: k(rdK)
            C(2, 4); E(10, 14); C(4, 5); MF(O, vf, P, O); E(14, 16); C(5, 8)
        elif AV == 3:
            E(0, 2); C(0, 1); E(2, 4); C(1, 2); MF(*prevPV2)
            if rdV: k(rdV)
            E(4, 6); C(2, 3); E(6, 8); C(3, 4); MF(*nextQK)
            if rdK: k(rdK)
            E(8, 10); C(4, 5); E(10, 12); MF(O, vf, P, O); C(5, 6); E(12, 14); C(6, 7); E(14, 16); k("s_nop 0"); C(7, 8)
    k.label("L_attn_loop")
    k("s_cmp_lg_u32 s30, 9\ns_cbranch_scc1 L_attn_nb\ns_waitcnt vmcnt(0)\ns_barrier")
    k(f"""
    s_cmp_lg_u32 s52, 1
    s_cbranch_scc1 L_attn_nb
    s_mov_b32 s52, 0
    v_mov_b32 v58, 0x00003f80
    v_mov_b32 v59, 0x3f800000
    v_mov_b32 v60, 0
    v_mov_b32 v61, 0
    v_mov_b32 v62, 0
    v_mov_b32 v63, 0
    """)
    for r in range(8):
        k(f"""
        v_dot2_f32_bf16 v60, v{XF+2*r}, v58, v60
        v_dot2_f32_bf16 v61, v{XF+2*r}, v59, v61
        v_dot2_f32_bf16 v62, v{XF+2*r+1}, v58, v62
        v_dot2_f32_bf16 v63, v{XF+2*r+1}, v59, v63
        """)
    k(f"""
    s_lshl_b32 s51, s49, 8
    s_add_u32 s51, s51, s48
    s_lshl_b32 s51, s51, 2
    s_add_u32 s51, s51, {WS_CS}
    s_nop 2
    buffer_atomic_add_f32 v60, v{vL16}, s[8:11], s51 offen
    buffer_atomic_add_f32 v61, v{vL16}, s[8:11], s51 offen offset:4
    buffer_atomic_add_f32 v62, v{vL16}, s[8:11], s51 offen offset:8
    buffer_atomic_add_f32 v63, v{vL16}, s[8:11], s51 offen offset:12
    """)
    k.label("L_attn_nb")
    for par in range(2):
        if AV == 6:
            k(f"s_setprio {par}")
        if AV == 7:
            k(f"s_add_u32 s31, s22, {par}\ns_bitcmp1_b32 s31, 0\ns_cbranch_scc1 L_attn_p{par}\ns_setprio 0\ns_branch L_attn_q{par}")
            k.label(f"L_attn_p{par}"); k("s_setprio 1"); k.label(f"L_attn_q{par}")
        k("s_waitcnt lgkmcnt(0)")
        unit(SA, PA, OA, VF[par], (OB, VF[1-par]+4, PB+4, OB), (SB, KF[par], QB, CB),
             rdV=f"ds_read_b128 {vr(VF[1-par],4)}, v{vV} offset:{(1+par)*64}\nds_read_b128 {vr(VF[1-par]+4,4)}, v{vV} offset:{(1+par)*64+32}",
             rdK=f"ds_read_b128 {vr(KF[par],4)}, v{vK} offset:{(2+par)*1024}")
        unit(SB, PB, OB, VF[par], (OA, VF[par]+4, PA+4, OA), (SA, KF[1-par], QA, CA))
    k(f"""
    v_add_u32 v{vK}, 2048, v{vK}
    v_add_u32 v{vV}, 128, v{vV}
    s_sub_u32 s30, s30, 1
    s_cmp_lg_u32 s30, 0
    s_cbranch_scc1 L_attn_loop
    v_mfma_f32_32x32x16_bf16 {vr(OB,16)}, {vr(VF[1]+4,4)}, {vr(PB+4,4)}, {vr(OB,16)}
    """)
    stamp(k, 2)
    k(f"""
    s_waitcnt lgkmcnt(0)
    s_nop 15
    s_mul_i32 s26, s21, 4608
    s_add_u32 s26, s26, {CBASE}
    v_add_u32 v60, s26, v{vL16}
    v_lshrrev_b32 v61, 2, v{vL16}
    v_add_u32 v61, s26, v61
    v_mov_b32 v62, {FLAG}
    s_cmp_eq_u32 s22, 0
    s_cbranch_scc1 L_attn_lo
    ds_write_b128 v60, {vr(OA,4)}
    ds_write_b128 v60, {vr(OA+4,4)} offset:1024
    ds_write_b32 v61, v{OA+8} offset:2048
    ds_write_b128 v60, {vr(OB,4)} offset:2304
    ds_write_b128 v60, {vr(OB+4,4)} offset:3328
    ds_write_b32 v61, v{OB+8} offset:4352
    s_waitcnt lgkmcnt(0)
    s_barrier
    s_branch L_attn_join
    """)
    k.label("L_attn_lo")
    k(f"""
    s_barrier
    ds_read_b128 {vr(SA,4)}, v60
    ds_read_b128 {vr(SA+4,4)}, v60 offset:1024
    ds_read_b32 v{SA+8}, v61 offset:2048
    ds_read_b128 {vr(SB,4)}, v60 offset:2304
    ds_read_b128 {vr(SB+4,4)}, v60 offset:3328
    ds_read_b32 v{SB+8}, v61 offset:4352
    s_waitcnt lgkmcnt(0)
    """)
    for i in range(9): k(f"v_add_f32 v{OA+i}, v{OA+i}, v{SA+i}\nv_add_f32 v{OB+i}, v{OB+i}, v{SB+i}")
    k(f"""
    v_mov_b32 v58, v{OA+8}
    v_mov_b32 v59, v{OB+8}
    s_mov_b32 s26, 0x1f800000         ; 2^-64
    s_mov_b32 s27, 0x5f800000         ; 2^64
    v_permlane32_swap_b32 v{OA+8}, v58
    v_permlane32_swap_b32 v{OB+8}, v59
    s_nop 1
    v_cmp_nle_f32 s[54:55], s26, v{OA+8}
    v_cmp_nle_f32 s[56:57], s26, v{OB+8}
    v_cmp_nge_f32 vcc, s27, v{OA+8}
    s_or_b64 s[54:55], s[54:55], s[56:57]
    s_or_b64 s[54:55], s[54:55], vcc
    v_cmp_nge_f32 vcc, s27, v{OB+8}
    v_mov_b32 v63, 1
    s_or_b64 s[54:55], s[54:55], vcc
    s_cmp_eq_u64 s[54:55], 0
    s_cbranch_scc1 L_attn_join
    ds_write_b32 v62, v63
    s_waitcnt lgkmcnt(0)
    """)
    k.label("L_attn_join")
    k(f"""
    s_barrier
    ds_read_b32 v63, v62
    s_waitcnt lgkmcnt(0)
    v_readfirstlane_b32 s26, v63
    s_cmp_lg_u32 s53, 0
    s_cselect_b32 s26, 0, s26
    s_cmp_lg_u32 s26, 0
    s_cbranch_scc1 L_attn_slow
    """)
    stamp_out(k, 3, "s[8:11]", 8, base=0x1100000)
    k(f"""
    s_cmp_lg_u32 s22, 0
    s_cbranch_scc1 L_attn_end
    v_rcp_f32 v58, v{OA+8}
    v_rcp_f32 v59, v{OB+8}
    s_nop 0
    """)
    for i in range(8): k(f"v_mul_f32 v{OA+i}, v{OA+i}, v58\nv_mul_f32 v{OB+i}, v{OB+i}, v59")
    for i in range(4): k(f"v_cvt_pk_bf16_f32 v{PA+i}, v{OA+2*i}, v{OA+2*i+1}\nv_cvt_pk_bf16_f32 v{PB+i}, v{OB+2*i}, v{OB+2*i+1}")
    k(f"""
    v_and_b32 v6, 31, v0
    v_lshlrev_b32 v6, 5, v6
    v_lshl_or_b32 v6, v7, 3, v6       ; row*32 + 8h
    s_add_u32 s24, s24, {WS_O}
    buffer_store_dwordx2 {vr(PA,2)}, v6, s[8:11], s24 offen
    buffer_store_dwordx2 {vr(PA+2,2)}, v6, s[8:11], s24 offen offset:16
    buffer_store_dwordx2 {vr(PB,2)}, v6, s[8:11], s24 offen offset:1024
    buffer_store_dwordx2 {vr(PB+2,2)}, v6, s[8:11], s24 offen offset:1040
    s_branch L_attn_end
    """)
    k.label("L_attn_slow")
    k(f"""
    s_mov_b32 s53, 1
    s_lshl_b32 s26, s22, 15
    v_add_u32 v{vK}, s26, v{vL16}
    v_mov_b32 v4, 0xff800000
    v_mov_b32 v5, 0xff800000
    s_mov_b32 s30, 32
    """)
    k.label("L_attn_mloop")
    k(f"""
    ds_read_b128 {vr(KF[0],4)}, v{vK}
    v_add_u32 v{vK}, 1024, v{vK}
    s_waitcnt lgkmcnt(0)
    v_mfma_f32_32x32x16_bf16 {vr(SA,16)}, {vr(KF[0],4)}, {vr(QA,4)}, 0
    v_mfma_f32_32x32x16_bf16 {vr(SB,16)}, {vr(KF[0],4)}, {vr(QB,4)}, 0
    s_nop 15
    s_nop 7
    """)
    for i in range(8): k(f"v_max3_f32 v4, v4, v{SA+2*i}, v{SA+2*i+1}\nv_max3_f32 v5, v5, v{SB+2*i}, v{SB+2*i+1}")
    k(f"""
    s_sub_u32 s30, s30, 1
    s_cmp_lg_u32 s30, 0
    s_cbranch_scc1 L_attn_mloop
    v_mov_b32 v58, v4
    v_mov_b32 v59, v5
    s_nop 1
    v_permlane32_swap_b32 v4, v58
    v_permlane32_swap_b32 v5, v59
    s_nop 1
    v_max_f32 v4, v4, v58
    v_max_f32 v5, v5, v59
    s_lshl_b32 s26, s22, 9            ; kh*512
    v_add_u32 v58, s26, v61
    s_sub_u32 s27, 512, s26
    v_add_u32 v59, s27, v61
    ds_write_b32 v58, v4
    ds_write_b32 v58, v5 offset:256
    s_waitcnt lgkmcnt(0)
    s_barrier
    ds_read_b32 v56, v59
    ds_read_b32 v57, v59 offset:256
    s_waitcnt lgkmcnt(0)
    v_max_f32 v4, v4, v56
    v_max_f32 v5, v5, v57
    s_barrier
    s_branch L_attn_pass
    """)
    k.label("L_attn_end")
    k("s_endpgm")
    return k

QSCALE = 0.25 * 1.4426950408889634
def fhex(x):
    import struct
    return "0x%08x" % struct.unpack("<I", struct.pack("<f", x))[0]

def lane_consts(k):
    k("""
    v_and_b32 v4, 63, v0
    v_lshrrev_b32 v6, 6, v0
    v_and_b32 v5, 31, v0
    v_readfirstlane_b32 s20, v6
    v_bfe_u32 v7, v0, 5, 1
    """)

def tr_addr(k, vdst, rw_shift, swz_mode):
    k(f"""
    v_bfe_u32 v10, v0, 2, 2           ; i>>2
    v_lshl_add_u32 v11, v7, 3, v10    ; row = 8h + (i>>2)
    v_lshlrev_b32 v11, {rw_shift}, v11
    v_bfe_u32 v12, v0, 4, 1           ; g&1
    v_bfe_u32 v13, v0, 1, 1           ; (i&3)>>1
    v_lshl_add_u32 v12, v12, 1, v13   ; chunk
    """)
    if swz_mode == 'r128':
        k("v_bfe_u32 v13, v0, 3, 1\nv_lshlrev_b32 v13, 2, v13\nv_xor_b32 v12, v12, v13")
    elif swz_mode == 'r256':
        k("v_lshlrev_b32 v13, 2, v10\nv_xor_b32 v12, v12, v13")
    k(f"""
    v_lshl_add_u32 v11, v12, 4, v11
    v_and_b32 v13, 1, v0
    v_lshl_add_u32 v{vdst}, v13, 3, v11
    """)

class G:
    pass

def log2(x):
    r = x.bit_length() - 1
    assert 1 << r == x
    return r

def gemm_setup(k, c):
    NW = c.WM * c.WN
    c.RX = c.KC * 2; c.LX = c.RX // 16; c.RPI = 64 // c.LX
    c.RW = c.BN * 2; c.CW = c.RW // 16; c.RPW = 64 // c.CW
    c.BM = c.WM * c.MT * 32
    c.NXI = c.BM * c.RX // 1024; c.NWI = c.KC * c.RW // 1024
    assert c.NXI % NW == 0 and c.NWI % NW == 0, (c.NXI, c.NWI)
    c.XB = c.BM * c.RX; c.WB = c.KC * c.RW
    c.SB = c.XB + c.NMAT * c.WB
    c.KS = c.KC // 16; c.NST = c.K // c.KC
    c.DPS = (c.NXI + c.NMAT * c.NWI) // NW
    lw = log2(c.WM)
    k(f"s_and_b32 s23, s20, {c.WM-1}\ns_lshr_b32 s24, s20, {lw}")
    llx = log2(c.LX)
    k(f"v_lshrrev_b32 v10, {llx}, v4\nv_and_b32 v11, {c.LX-1}, v4\nv_lshrrev_b32 v12, 4, v4")
    if c.LX == 16:
        k("s_lshl_b32 s25, s20, 2\nv_add_u32 v12, s25, v12\nv_and_b32 v12, 15, v12")
    else:
        assert c.LX == 8
        k("s_lshl_b32 s25, s20, 2\nv_add_u32 v12, s25, v12\nv_and_b32 v12, 7, v12")
    k(f"v_xor_b32 v11, v11, v12\ns_mov_b32 s25, {c.ldx}\nv_mul_lo_u32 v10, v10, s25\nv_lshl_add_u32 v{c.vDX}, v11, 4, v10")
    lcw = log2(c.CW)
    k(f"v_lshrrev_b32 v10, {lcw}, v4\nv_and_b32 v11, {c.CW-1}, v4")
    if c.RW == 128: k("v_bfe_u32 v12, v4, 4, 1\nv_lshlrev_b32 v12, 2, v12\nv_xor_b32 v11, v11, v12")
    elif c.RW == 256: k("v_bfe_u32 v12, v4, 4, 2\nv_lshlrev_b32 v12, 2, v12\nv_xor_b32 v11, v11, v12")
    else: assert False
    k(f"s_mov_b32 s25, {c.ldw}\nv_mul_lo_u32 v10, v10, s25\nv_lshl_add_u32 v{c.vDW}, v11, 4, v10")
    k(f"""
    s_mul_i32 s25, s20, {c.RPI}
    s_add_u32 s25, s25, s21
    s_mul_i32 s26, s25, {c.ldx}
    s_add_u32 s26, s26, {c.xbase}
    s_mul_i32 s27, s20, {c.RPW * c.ldw}
    s_lshl_b32 s25, s22, 1
    s_add_u32 s27, s27, s25
    s_lshl_b32 s28, s20, 10
    """)
    gemm_prologue(k, c, c.NPRE)
    if c.LX == 16: k("v_and_b32 v10, 15, v5")
    else: k("v_bfe_u32 v10, v5, 1, 3")
    k(f"""
    v_xor_b32 v10, v10, v7
    v_lshlrev_b32 v10, 4, v10
    v_lshl_add_u32 v10, v5, {log2(c.RX)}, v10
    s_mul_i32 s25, s23, {c.MT * 32 * c.RX}
    """)
    for ks in range(c.KS):
        k(f"v_xor_b32 v{c.vXb+ks}, {32*ks}, v10\nv_add_u32 v{c.vXb+ks}, s25, v{c.vXb+ks}")
    tr_addr(k, 14, log2(c.RW), 'r128' if c.RW == 128 else 'r256')
    for nt in range(c.NT):
        k(f"s_mul_i32 s25, s24, {c.NT}\ns_add_u32 s25, s25, {nt}\ns_lshl_b32 s25, s25, 6\nv_xor_b32 v{c.vWb+nt}, s25, v14\nv_add_u32 v{c.vWb+nt}, {c.XB}, v{c.vWb+nt}")

def gemm_dma_list(c, st):
    NW = c.WM * c.WN
    slot = (st % c.R) * c.SB
    k0 = st * c.KC
    out = []
    for j in range(c.NXI // NW):
        out.append(f"""
        s_add_u32 s38, s28, {slot + j*NW*1024}
        s_mov_b32 m0, s38
        s_add_u32 s39, s26, {j*NW*c.RPI*c.ldx + k0*2}
        buffer_load_dwordx4 v{c.vDX}, {c.xsrd}, s39 offen lds
        """)
    for mat in range(c.NMAT):
        for j in range(c.NWI // NW):
            out.append(f"""
            s_add_u32 s38, s28, {slot + c.XB + mat*c.WB + j*NW*1024}
            s_mov_b32 m0, s38
            s_add_u32 s39, s27, {(j*NW*c.RPW + k0)*c.ldw}
            buffer_load_dwordx4 v{c.vDW}, {c.wsrd[mat]}, s39 offen lds
            """)
    return out

def gemm_prologue(k, c, npre=1):
    c.Q = [(st, a) for st in range(c.NST) for a in gemm_dma_list(c, st)]
    c.log = []
    while c.Q and c.Q[0][0] < npre:
        st, a = c.Q.pop(0); k(a); c.log.append(st)

def gemm_main(k, c, extra_hook=None, nextra=0, kstep_hook=None, per_ks=2):
    NST, R = c.NST, c.R
    nfr = c.MT + 2 * c.NMAT * c.NT
    stamp(k, 1)
    for st in range(NST):
        last = max(i for i, x in enumerate(c.log) if x == st)
        assert c.log.count(st) == c.DPS
        slot = (st % R) * c.SB
        for ks in range(c.KS): k(f"v_add_u32 v{c.vXa+ks}, {slot}, v{c.vXb+ks}")
        for nt in range(c.NT): k(f"v_add_u32 v{c.vWa+nt}, {slot}, v{c.vWb+nt}")
        k(f"s_waitcnt vmcnt({len(c.log) - 1 - last})\ns_barrier")
        if st < 9: stamp(k, 2 + st)
        def rd(ks):
            b = c.FR[ks % 2]
            for mt in range(c.MT):
                k(f"ds_read_b128 {vr(b+4*mt,4)}, v{c.vXa+ks} offset:{mt*32*c.RX}")
            b += 4 * c.MT
            for mat in range(c.NMAT):
                for nt in range(c.NT):
                    for t in range(2):
                        k(f"ds_read_b64_tr_b16 {vr(b+2*t,2)}, v{c.vWa+nt} offset:{mat*c.WB + ks*16*c.RW + t*4*c.RW}")
                    b += 4
        rd(0)
        for ks in range(c.KS):
            if ks + 1 < c.KS:
                rd(ks + 1); k(f"s_waitcnt lgkmcnt({nfr})")
            else: k("s_waitcnt lgkmcnt(0)")
            b = c.FR[ks % 2]
            for mat in range(c.NMAT):
                for nt in range(c.NT):
                    wf = b + 4*c.MT + 4*(mat*c.NT + nt)
                    for mt in range(c.MT):
                        a = c.ACC + 16 * ((mat*c.NT + nt) * c.MT + mt)
                        k(f"v_mfma_f32_32x32x16_bf16 {vr(a,16)}, {vr(wf,4)}, {vr(b+4*mt,4)}, {vr(a,16)}")
            if kstep_hook: kstep_hook(b)
            if getattr(c, 'STAG', False):
                if ks == 0:
                    D = []
                    while c.Q and c.Q[0][0] <= st + R - 1: D.append(c.Q.pop(0))
                    c.D = D
                    for s2, a in D: c.log.append(s2)
                half = c.KS // 2
                g = ks // half; j = ks % half
                per = (len(c.D) + half - 1) // half
                part = c.D[j*per:(j+1)*per]
                if part:
                    lab = f"L_{k.name}_sg_{st}_{ks}"
                    k(f"s_cmp_lg_u32 s33, {g}\ns_cbranch_scc1 {lab}")
                    for s2, a in part: k(a)
                    k.label(lab)
                if ks == c.KS - 1 and not c.Q and extra_hook:
                    extra_hook(); c.log += ['x'] * nextra; extra_hook = None
            else:
                n = 0
                while c.Q and c.Q[0][0] <= st + R - 1 and (n < per_ks or (ks == c.KS - 1 and c.Q[0][0] == st + 1)):
                    s2, a = c.Q.pop(0); k(a); c.log.append(s2); n += 1
                if not c.Q and extra_hook:
                    extra_hook(); c.log += ['x'] * nextra; extra_hook = None
    k("s_nop 15")
    stamp(k, 11)

def half_sum(k, regs, tmps):
    for r, t in zip(regs, tmps): k(f"v_mov_b32 v{t}, v{r}")
    k("s_nop 1")
    for r, t in zip(regs, tmps): k(f"v_permlane32_swap_b32 v{r}, v{t}")
    k("s_nop 1")
    for r, t in zip(regs, tmps): k(f"v_add_f32 v{r}, v{r}, v{t}")

def colsum_part(k, L, XF):
    srd(k, 40, 32, 1835008); srd(k, 44, 34, 1835008)
    k(f"""
    s_lshl_b32 s38, s2, 2
    s_add_u32 s38, s38, s20           ; W
    s_cmp_ge_u32 s38, 896
    s_cbranch_scc1 L_{L}_end
    s_cmp_ge_u32 s38, 448
    s_cselect_b32 s39, 448, 0
    s_cselect_b32 s48, 1792, 0
    s_cselect_b32 s40, s44, s40
    s_cselect_b32 s41, s45, s41
    s_sub_u32 s38, s38, s39           ; rem
    s_mul_i32 s39, s38, 9363
    s_lshr_b32 s39, s39, 16           ; rc
    s_mul_i32 s49, s39, 7
    s_sub_u32 s49, s38, s49           ; cb
    s_mul_i32 s50, s39, {8*3584}
    s_lshl_b32 s51, s49, 9
    s_add_u32 s50, s50, s51
    v_lshlrev_b32 v10, 3, v4
    """)
    for r in range(8):
        k(f"buffer_load_dwordx2 {vr(XF+2*r,2)}, v10, s[40:43], s50 offen")
        if r < 7: k(f"s_add_u32 s50, s50, 3584")
    k(f"""
    v_mov_b32 v12, 0x00003f80
    v_mov_b32 v13, 0x3f800000
    v_mov_b32 v16, 0
    v_mov_b32 v17, 0
    v_mov_b32 v18, 0
    v_mov_b32 v19, 0
    s_waitcnt vmcnt(0)
    """)
    for r in range(8):
        k(f"""
        v_dot2_f32_bf16 v16, v{XF+2*r}, v12, v16
        v_dot2_f32_bf16 v17, v{XF+2*r}, v13, v17
        v_dot2_f32_bf16 v18, v{XF+2*r+1}, v12, v18
        v_dot2_f32_bf16 v19, v{XF+2*r+1}, v13, v19
        """)
    k(f"""
    s_lshl_b32 s51, s49, 8
    s_add_u32 s51, s51, s48
    s_lshl_b32 s51, s51, 2
    s_add_u32 s51, s51, {WS_CS}
    v_lshlrev_b32 v10, 4, v4
    s_nop 2
    buffer_atomic_add_f32 v16, v10, s[16:19], s51 offen
    buffer_atomic_add_f32 v17, v10, s[16:19], s51 offen offset:4
    buffer_atomic_add_f32 v18, v10, s[16:19], s51 offen offset:8
    buffer_atomic_add_f32 v19, v10, s[16:19], s51 offen offset:12
    """)

def cfg64(K, KC, R, ldx, xbase, xsrd, ldw):
    c = G()
    c.WM, c.WN, c.MT, c.NT, c.NMAT, c.BN = 2, 2, 1, 1, 1, 64
    c.K, c.KC, c.R, c.ldx, c.xbase, c.xsrd, c.ldw, c.wsrd = K, KC, R, ldx, xbase, xsrd, ldw, ["s[12:15]"]
    c.vDX, c.vDW = 1, 2
    c.vXb, c.vXa, c.vWb, c.vWa = 16, 24, 32, 33
    c.FR = [36, 44]
    c.ACC = 64
    c.NPRE = 1
    return c

def map64(k):
    k("""
    s_and_b32 s21, s2, 7
    s_lshl_b32 s21, s21, 2
    s_lshr_b32 s22, s2, 6
    s_add_u32 s21, s21, s22
    s_lshl_b32 s21, s21, 6
    s_bfe_u32 s22, s2, 0x30003
    s_lshl_b32 s22, s22, 6
    """)

def gen_res(kind, KC=128, R=4):
    k3 = kind == 'k3'
    name = "wo_kernel" if k3 else "down_kernel"
    L = name
    if k3: c = cfg64(512, KC, R, 1024, WS_O, "s[16:19]", 1024)
    else: c = cfg64(1792, KC, R, 3584, WS_ACT, "s[16:19]", 1024)
    SB = 64 * KC * 2 * 2
    k = Kern(name, (256, 1, 1), (256, 1, 1), SB * R, 112)
    RES = 80; ACC = c.ACC; vSum, vSq, ONES = 8, 9, 15
    k(f"s_cmp_ge_u32 s2, 256\ns_cbranch_scc1 L_{L}_end")
    if k3:
        k("s_load_dwordx2 s[4:5], s[0:1], 0\ns_load_dwordx2 s[6:7], s[0:1], 32\ns_load_dwordx4 s[32:35], s[0:1], 48\ns_load_dwordx2 s[36:37], s[0:1], 88")
    else:
        k("s_load_dwordx4 s[4:7], s[0:1], 64\ns_load_dwordx2 s[36:37], s[0:1], 88")
    stamp(k, 0)
    lane_consts(k)
    map64(k)
    k("s_waitcnt lgkmcnt(0)")
    if k3:
        srd(k, 8, 4, 2097152); srd(k, 12, 6, 524288)
    else:
        srd(k, 12, 4, 1835008); srd(k, 8, 6, 2097152)
    srd(k, 16, 36, WS_SIZE)
    gemm_setup(k, c)
    for i in range(16): k(f"v_mov_b32 v{ACC+i}, 0")
    k(f"""
    s_lshl_b32 s31, s21, 10
    s_lshl_b32 s25, s22, 1
    s_add_u32 s31, s31, s25
    v_lshrrev_b32 v3, 3, v0
    v_and_b32 v6, 7, v0
    v_lshlrev_b32 v3, 10, v3
    v_lshl_add_u32 v3, v6, 4, v3
    """)
    def extra():
        if k3:
            k(f"s_add_u32 s25, s31, 32768\nbuffer_load_dwordx4 {vr(RES,4)}, v3, s[8:11], s31 offen\nbuffer_load_dwordx4 {vr(RES+4,4)}, v3, s[8:11], s25 offen")
        else:
            k(f"s_add_u32 s25, s31, {WS_H}\nbuffer_load_dwordx4 {vr(RES,4)}, v3, s[16:19], s25 offen")
            k(f"s_add_u32 s25, s31, {WS_H+32768}\nbuffer_load_dwordx4 {vr(RES+4,4)}, v3, s[16:19], s25 offen")
    gemm_main(k, c, extra, 2)
    RS = 272
    k(f"""
    s_barrier
    s_lshl_b32 s25, s23, 5
    v_add_u32 v10, s25, v5
    s_movk_i32 s25, {RS}
    v_mul_lo_u32 v10, v10, s25
    v_lshl_add_u32 v10, v7, 4, v10
    s_lshl_b32 s25, s24, 7
    v_add_u32 v10, s25, v10
    """)
    for g in range(4): k(f"ds_write_b128 v10, {vr(ACC+4*g,4)} offset:{32*g}")
    k(f"""
    v_lshrrev_b32 v10, 3, v0
    s_movk_i32 s25, {RS}
    v_mul_lo_u32 v10, v10, s25
    v_lshl_add_u32 v10, v6, 5, v10
    s_waitcnt lgkmcnt(0)
    s_barrier
    """)
    for p in range(2):
        k(f"ds_read_b128 {vr(ACC+8*p,4)}, v10 offset:{p*32*RS}\nds_read_b128 {vr(ACC+8*p+4,4)}, v10 offset:{p*32*RS+16}")
    k("s_waitcnt vmcnt(0) lgkmcnt(0)")
    for r in range(8):
        k(f"v_lshlrev_b32 v12, 16, v{RES+r}\nv_and_b32 v13, 0xffff0000, v{RES+r}")
        k(f"v_add_f32 v{ACC+2*r}, v{ACC+2*r}, v12\nv_add_f32 v{ACC+2*r+1}, v{ACC+2*r+1}, v13")
    for r in range(8): k(f"v_cvt_pk_bf16_f32 v{ACC+r}, v{ACC+2*r}, v{ACC+2*r+1}")
    if k3:
        k(f"s_add_u32 s25, s31, {WS_H}\nbuffer_store_dwordx4 {vr(ACC,4)}, v3, s[16:19], s25 offen")
        k(f"s_add_u32 s25, s31, {WS_H+32768}\nbuffer_store_dwordx4 {vr(ACC+4,4)}, v3, s[16:19], s25 offen")
        S = RES
        for i in range(4): k(f"v_mov_b32 v{S+i}, 0")
        k(f"v_mov_b32 v{ONES}, 0x3f803f80")
        for r in range(4):
            for p in range(2):
                k(f"v_dot2_f32_bf16 v{S+2*p}, v{ACC+4*p+r}, v{ONES}, v{S+2*p}\nv_dot2_f32_bf16 v{S+2*p+1}, v{ACC+4*p+r}, v{ACC+4*p+r}, v{S+2*p+1}")
        k("s_nop 2")
        for dpp in ("quad_perm:[1,0,3,2]", "quad_perm:[2,3,0,1]", "row_half_mirror"):
            for i in range(4): k(f"v_add_f32_dpp v{S+i}, v{S+i}, v{S+i} {dpp} row_mask:0xf bank_mask:0xf")
            k("s_nop 1")
        k(f"""
        v_lshrrev_b32 v10, 3, v0
        v_lshlrev_b32 v10, 3, v10         ; row*8
        s_lshl_b32 s38, s21, 3            ; row0*8
        s_lshl_b32 s39, s22, 8            ; cb*16384
        s_add_u32 s38, s38, s39
        s_add_u32 s38, s38, {WS_ST}
        buffer_store_dwordx2 {vr(S,2)}, v10, s[16:19], s38 offen
        buffer_store_dwordx2 {vr(S+2,2)}, v10, s[16:19], s38 offen offset:256
        """)
        stamp_out(k, 12, "s[16:19]", 4)
    else:
        k(f"buffer_store_dwordx4 {vr(ACC,4)}, v3, s[8:11], s31 offen")
        k(f"s_add_u32 s25, s31, 32768\nbuffer_store_dwordx4 {vr(ACC+4,4)}, v3, s[8:11], s25 offen")
        stamp_out(k, 12, "s[16:19]", 4)
    k.label(f"L_{L}_end")
    k("s_endpgm")
    return k

def gen_qkv(KC=64, R=5):
    name = "qkv_kernel"; L = name
    c = cfg64(512, KC, R, 1024, 0, "s[8:11]", 1024)
    k = Kern(name, (320, 1, 1), (256, 1, 1), 81920, 128)
    ACC = c.ACC; ACC1 = 80; ONES = 96; vS = 100
    k(f"s_cmp_ge_u32 s2, 320\ns_cbranch_scc1 L_{L}_end")
    k("s_load_dwordx4 s[4:7], s[0:1], 0\ns_load_dwordx4 s[32:35], s[0:1], 16\ns_load_dwordx2 s[36:37], s[0:1], 88")
    stamp(k, 0)
    lane_consts(k)
    k("s_waitcnt lgkmcnt(0)")
    srd(k, 8, 4, 2097152); srd(k, 12, 6, 524288); srd(k, 16, 36, WS_SIZE)
    for i in range(16): k(f"v_mov_b32 v{ACC+i}, 0\nv_mov_b32 v{ACC1+i}, 0")
    for i in range(4): k(f"v_mov_b32 v{ONES+i}, 0x3f803f80")
    for i in range(8): k(f"v_mov_b32 v{vS+i}, 0")
    def hook(b):
        k(f"v_mfma_f32_32x32x16_bf16 {vr(ACC1,16)}, {vr(b+4,4)}, {vr(ONES,4)}, {vr(ACC1,16)}")
        U = 108
        for r in range(4):
            k(f"v_lshlrev_b32 v{U+2*r}, 16, v{b+r}\nv_and_b32 v{U+2*r+1}, 0xffff0000, v{b+r}")
        for r in range(4):
            a = vS + 2 * (r & 1)
            k(f"v_pk_add_f32 {vr(a,2)}, {vr(a,2)}, {vr(U+2*r,2)}")
            k(f"v_pk_fma_f32 {vr(a+4,2)}, {vr(U+2*r,2)}, {vr(U+2*r,2)}, {vr(a+4,2)}")
    def ln_stats(scale):
        k(f"""
        v_add_f32 v{vS}, v{vS}, v{vS+1}
        v_add_f32 v{vS+2}, v{vS+2}, v{vS+3}
        v_add_f32 v{vS+4}, v{vS+4}, v{vS+5}
        v_add_f32 v{vS+6}, v{vS+6}, v{vS+7}
        v_add_f32 v{vS}, v{vS}, v{vS+2}
        v_add_f32 v{vS+1}, v{vS+4}, v{vS+6}
        """)
        half_sum(k, [vS, vS+1], [12, 13])
        k(f"""
        v_mul_f32 v12, {fhex(-1.0/512)}, v{vS}
        v_mul_f32 v13, {fhex(1.0/512)}, v{vS+1}
        v_fma_f32 v13, -v12, v12, v13
        v_max_f32 v13, 0, v13
        v_add_f32 v13, {fhex(1e-5)}, v13
        v_rsq_f32 v13, v13
        s_nop 0
        v_mul_f32 v13, {fhex(scale)}, v13
        """)
        for r in range(16):
            k(f"v_fma_f32 v{ACC+r}, v12, v{ACC1+r}, v{ACC+r}\nv_mul_f32 v{ACC+r}, v{ACC+r}, v13")
        for r in range(8): k(f"v_cvt_pk_bf16_f32 v{ACC+r}, v{ACC+2*r}, v{ACC+2*r+1}")
    k(f"s_cmp_ge_u32 s2, 256\ns_cbranch_scc1 L_{L}_kv")
    map64(k)
    gemm_setup(k, c)
    k("s_or_b32 s45, s21, s23")
    cnt = [0]
    def hookq(b):
        cnt[0] += 1
        lab = f"L_{L}_cs{cnt[0]}"
        k(f"s_cmp_lg_u32 s45, 0\ns_cbranch_scc1 {lab}")
        k(f"v_mfma_f32_32x32x16_bf16 {vr(ACC1,16)}, {vr(b+4,4)}, {vr(ONES,4)}, {vr(ACC1,16)}")
        k.label(lab)
    gemm_main(k, c, kstep_hook=hookq)
    RS = 272
    k(f"""
    s_barrier
    s_lshl_b32 s25, s23, 5
    v_add_u32 v10, s25, v5
    s_movk_i32 s25, {RS}
    v_mul_lo_u32 v10, v10, s25
    v_lshl_add_u32 v10, v7, 4, v10
    s_lshl_b32 s25, s24, 7
    v_add_u32 v10, s25, v10
    """)
    for g in range(4): k(f"ds_write_b128 v10, {vr(ACC+4*g,4)} offset:{32*g}")
    k(f"""
    v_lshrrev_b32 v3, 4, v0
    v_and_b32 v6, 15, v0
    s_movk_i32 s25, {RS}
    v_mul_lo_u32 v10, v3, s25
    v_lshl_add_u32 v10, v6, 4, v10
    v_lshlrev_b32 v3, 11, v3
    v_lshl_add_u32 v3, v6, 4, v3
    s_lshl_b32 s31, s21, 11
    s_lshl_b32 s25, s22, 2
    s_add_u32 s31, s31, s25
    s_add_u32 s31, s31, {WS_G}
    s_waitcnt lgkmcnt(0)
    s_barrier
    """)
    for p in range(4): k(f"ds_read_b128 {vr(ACC+4*p,4)}, v10 offset:{p*16*RS}")
    for p in range(4):
        k(f"s_waitcnt lgkmcnt({3-p})\nbuffer_store_dwordx4 {vr(ACC+4*p,4)}, v3, s[16:19], s31 offen")
        if p < 3: k("s_add_u32 s31, s31, 32768")
    stamp_out(k, 12, "s[16:19]", 4)
    k(f"""
    s_cmp_lg_u32 s45, 0
    s_cbranch_scc1 L_{L}_end
    v_lshlrev_b32 v3, 4, v7
    s_lshl_b32 s25, s24, 5
    s_add_u32 s25, s25, s22
    s_lshl_b32 s25, s25, 2
    s_add_u32 s25, s25, {WS_CSQ}
    """)
    for g in range(4): k(f"buffer_store_dwordx4 {vr(ACC1+4*g,4)}, v3, s[16:19], s25 offen offset:{32*g}")
    k(f"s_branch L_{L}_end")
    k.label(f"L_{L}_kv")
    srd(k, 40, 32, 16384); srd(k, 44, 34, 16384)
    XB = 32768; VO = 16384 + 128
    vDX, vDW, vXb, vWb = 1, 2, 16, 32
    k(f"""
    s_sub_u32 s21, s2, 256
    s_lshl_b32 s21, s21, 5
    v_lshlrev_b32 v{vDW}, 4, v4
    s_lshl_b32 s25, s20, 3
    s_add_u32 s26, s25, s21
    s_lshl_b32 s26, s26, 10
    s_lshl_b32 s28, s20, 13
    s_lshl_b32 s29, s20, 12
    s_and_b32 s25, s25, 8             ; (8w)&15
    """)
    for j in range(8):
        k(f"""
        s_add_u32 s38, s25, {j}
        s_lshl_b32 s38, s38, 4
        v_xor_b32 v{vDX}, s38, v{vDW}
        s_add_u32 s38, s28, {j*1024}
        s_mov_b32 m0, s38
        s_add_u32 s39, s26, {j*1024}
        buffer_load_dwordx4 v{vDX}, s[8:11], s39 offen lds
        """)
    for j in range(4):
        k(f"""
        s_add_u32 s39, s29, {j*1024}
        s_add_u32 s38, s39, {XB}
        s_mov_b32 m0, s38
        s_nop 0
        buffer_load_dwordx4 v{vDW}, s[40:43], s39 offen lds
        s_add_u32 s38, s39, {XB+VO}
        s_mov_b32 m0, s38
        s_nop 0
        buffer_load_dwordx4 v{vDW}, s[44:47], s39 offen lds
        """)
    k(f"""
    v_and_b32 v10, 15, v5
    v_xor_b32 v10, v10, v7
    v_lshlrev_b32 v10, 4, v10
    v_lshl_add_u32 v10, v5, 10, v10
    s_lshl_b32 s25, s20, 8
    """)
    for ks in range(8): k(f"v_xor_b32 v{vXb+ks}, {32*ks}, v10\nv_add_u32 v{vXb+ks}, s25, v{vXb+ks}")
    k(f"""
    v_bfe_u32 v10, v0, 2, 2
    v_lshl_add_u32 v11, v7, 3, v10
    v_lshlrev_b32 v11, 5, v11         ; row*32
    v_and_b32 v12, 3, v0
    v_lshl_add_u32 v11, v12, 3, v11   ; + (i&3)*8
    v_bfe_u32 v12, v0, 4, 1
    s_movk_i32 s31, {VO}
    v_mad_u32_u24 v{vWb}, v12, s31, v11
    s_add_u32 s25, s29, {XB}
    v_add_u32 v{vWb}, s25, v{vWb}
    s_waitcnt vmcnt(0)
    s_barrier
    """)
    FR = c.FR
    def rd(ks):
        b = FR[ks % 2]
        k(f"ds_read_b128 {vr(b,4)}, v{vXb+ks}")
        k(f"ds_read_b64_tr_b16 {vr(b+4,2)}, v{vWb} offset:{ks*512}")
        k(f"ds_read_b64_tr_b16 {vr(b+6,2)}, v{vWb} offset:{ks*512+128}")
    rd(0)
    for ks in range(8):
        if ks < 7: rd(ks+1); k("s_waitcnt lgkmcnt(3)")
        else: k("s_waitcnt lgkmcnt(0)")
        b = FR[ks % 2]
        k(f"v_mfma_f32_32x32x16_bf16 {vr(ACC,16)}, {vr(b+4,4)}, {vr(b,4)}, {vr(ACC,16)}")
        hook(b)
    k(f"""
    s_nop 15
    s_barrier
    s_mul_i32 s25, s20, 10240
    v_add_u32 v10, s25, v{vDW}
    s_cmp_eq_u32 s20, 0
    s_cbranch_scc1 L_{L}_kvr
    """)
    blocks = [ACC + 4*i for i in range(4)] + [ACC1 + 4*i for i in range(4)] + [vS, vS + 4]
    for i, b in enumerate(blocks): k(f"ds_write_b128 v10, {vr(b,4)} offset:{i*1024}")
    k(f"s_waitcnt lgkmcnt(0)\ns_barrier\ns_branch L_{L}_end")
    k.label(f"L_{L}_kvr")
    k("s_barrier")
    T = 16
    for w in range(1, 4):
        for i, b in enumerate(blocks): k(f"ds_read_b128 {vr(T+4*i,4)}, v10 offset:{w*10240 + i*1024}")
        k("s_waitcnt lgkmcnt(0)")
        for i, b in enumerate(blocks):
            for r in range(4): k(f"v_add_f32 v{b+r}, v{b+r}, v{T+4*i+r}")
    ln_stats(1.0)
    vSq = vS
    k(f"""
    v_lshlrev_b32 v10, 3, v5
    s_lshl_b32 s38, s21, 3
    s_add_u32 s38, s38, {WS_XST}
    buffer_store_dwordx2 v[12:13], v10, s[16:19], s38 offen
    """)
    k(f"""
    s_mov_b32 s25, s21
    v_lshlrev_b32 v10, 4, v5
    v_lshl_add_u32 v10, v7, 3, v10
    s_lshl_b32 s38, s25, 5            ; tile*1024
    s_add_u32 s39, s38, {WS_K}
    buffer_store_dwordx2 {vr(ACC,2)}, v10, s[16:19], s39 offen
    buffer_store_dwordx2 {vr(ACC+2,2)}, v10, s[16:19], s39 offen offset:512
    v_mov_b32 v{vSq}, 0
    """)
    for r in range(4): k(f"v_dot2_f32_bf16 v{vSq}, v{ACC+r}, v{ACC+r}, v{vSq}")
    k(f"""
    v_and_b32 v11, 19, v5             ; 16i + (kk&3)
    v_bfe_u32 v12, v5, 2, 1
    v_lshl_add_u32 v11, v12, 3, v11
    v_bfe_u32 v12, v5, 3, 1
    v_lshl_add_u32 v11, v12, 2, v11   ; pos
    v_lshlrev_b32 v11, 1, v11
    v_lshl_add_u32 v11, v7, 14, v11   ; + 4h*4096
    s_lshl_b32 s38, s25, 1
    s_add_u32 s39, s38, {WS_VT}
    v_mov_b32 v31, v{vSq}
    """)
    for r in range(4):
        d0 = (r & 1) * 2 + (r >> 1) * 8
        k(f"s_add_u32 s38, s39, {d0*4096}")
        k(f"buffer_store_short v{ACC+4+r}, v11, s[16:19], s38 offen")
        k(f"s_add_u32 s38, s39, {(d0+1)*4096}")
        k(f"buffer_store_short_d16_hi v{ACC+4+r}, v11, s[16:19], s38 offen")
    k(f"""
    v_permlane32_swap_b32 v{vSq}, v31
    s_nop 1
    v_add_f32 v{vSq}, v{vSq}, v31
    s_nop 1
    v_max_f32_dpp v{vSq}, v{vSq}, v{vSq} quad_perm:[1,0,3,2] row_mask:0xf bank_mask:0xf
    s_nop 1
    v_max_f32_dpp v{vSq}, v{vSq}, v{vSq} quad_perm:[2,3,0,1] row_mask:0xf bank_mask:0xf
    s_nop 1
    v_max_f32_dpp v{vSq}, v{vSq}, v{vSq} row_ror:4 row_mask:0xf bank_mask:0xf
    s_nop 1
    v_max_f32_dpp v{vSq}, v{vSq}, v{vSq} row_ror:8 row_mask:0xf bank_mask:0xf
    s_nop 1
    v_mov_b32 v31, v{vSq}
    s_nop 1
    v_permlane16_swap_b32 v{vSq}, v31
    s_nop 1
    v_max_f32 v{vSq}, v{vSq}, v31
    s_lshr_b32 s38, s25, 3            ; tile*4
    s_add_u32 s38, s38, {WS_KN}
    v_mov_b32 v10, 0
    buffer_store_dword v{vSq}, v10, s[16:19], s38 offen
    """)
    stamp_out(k, 1, "s[16:19]", 4)
    k(f"""
    s_cmp_lg_u32 s25, 0
    s_cbranch_scc1 L_{L}_end
    v_mov_b32 v16, 0
    v_mov_b32 v17, 0
    v_mov_b32 v18, 0
    v_mov_b32 v19, 0
    s_mov_b32 s38, {WS_CS}
    """)
    for i in range(14):
        k(f"buffer_store_dwordx4 v[16:19], v{vDW}, s[16:19], s38 offen\ns_add_u32 s38, s38, 1024")
    k.label(f"L_{L}_end")
    k("s_endpgm")
    return k

def gen_ffn(KC=64, R=3):
    name = "ffn_kernel"; L = name
    c = G()
    c.WM, c.WN, c.MT, c.NT, c.NMAT, c.BN = 2, 4, 2, 1, 2, 128
    c.K, c.KC, c.R, c.ldx, c.xbase, c.xsrd, c.ldw, c.wsrd = 512, KC, R, 1024, WS_H, "s[16:19]", 3584, ["s[8:11]", "s[12:15]"]
    c.vDX, c.vDW = 1, 2
    c.vXb, c.vXa, c.vWb, c.vWa = 16, 24, 32, 33
    c.FR = [36, 52]
    c.ACC = 68 + 0
    c.ACC = 72
    c.NPRE = 1
    c.STAG = True
    SB = 128 * KC * 2 + 2 * KC * 256
    k = Kern(name, (224, 1, 1), (512, 1, 1), SB * R + 9216, 192)
    ST = 136
    CS = 152
    k(f"s_cmp_ge_u32 s2, 224\ns_cbranch_scc1 L_{L}_end")
    k("s_load_dwordx4 s[4:7], s[0:1], 48\ns_load_dwordx2 s[36:37], s[0:1], 88")
    stamp(k, 0)
    lane_consts(k)
    k("s_waitcnt lgkmcnt(0)")
    srd(k, 8, 4, 1835008); srd(k, 12, 6, 1835008); srd(k, 16, 36, WS_SIZE)
    if FFNMAP == 0:
        k("s_and_b32 s21, s2, 7\ns_mul_i32 s21, s21, 28\ns_lshr_b32 s22, s2, 3\ns_add_u32 s21, s21, s22\ns_lshr_b32 s22, s21, 4\ns_and_b32 s21, s21, 15\ns_lshl_b32 s21, s21, 7\ns_lshl_b32 s22, s22, 7")
    else:
        k("s_and_b32 s21, s2, 7\ns_lshl_b32 s21, s21, 1\ns_lshr_b32 s22, s2, 3\ns_cmp_ge_u32 s22, 14\ns_cselect_b32 s25, 14, 0\ns_addc_u32 s21, s21, 0\ns_sub_u32 s22, s22, s25\ns_lshl_b32 s21, s21, 7\ns_lshl_b32 s22, s22, 7")
    AUX = SB * R
    PRM = 184
    k(f"""
    s_lshr_b32 s33, s20, 2
    v_lshlrev_b32 v3, 4, v4
    s_lshl_b32 s25, s20, 10
    s_add_u32 s38, s25, {AUX}
    s_mov_b32 m0, s38
    s_lshl_b32 s25, s20, 14
    s_lshl_b32 s39, s21, 3
    s_add_u32 s39, s39, s25
    s_add_u32 s39, s39, {WS_ST}
    buffer_load_dwordx4 v3, s[16:19], s39 offen lds
    v_lshlrev_b32 v3, 4, v5
    s_movk_i32 s25, 7168
    v_mad_u32_u24 v3, v7, s25, v3
    s_mov_b32 m0, {AUX + 8192}
    s_lshl_b32 s39, s22, 2
    s_add_u32 s39, s39, {WS_CS}
    buffer_load_dwordx4 v3, s[16:19], s39 offen lds
    """)
    gemm_setup(k, c)
    GA = -2.0 * 0.7978845608028654 * 1.4426950408889634
    k(f"""
    s_lshl_b32 s25, s23, 9            ; wm*64*8
    v_lshlrev_b32 v3, 3, v5
    v_lshl_add_u32 v3, v7, 12, v3     ; m*8 + 4h*1024
    v_add_u32 v3, s25, v3
    v_add_u32 v3, {AUX}, v3
    s_lshl_b32 s25, s24, 7            ; wn*32*4
    v_lshlrev_b32 v6, 4, v7
    v_add_u32 v6, s25, v6
    v_add_u32 v6, {AUX + 8192}, v6
    s_waitcnt vmcnt({c.NPRE * c.DPS})
    s_barrier
    """)
    for mt in range(2):
        for j in range(4): k(f"ds_read_b64 {vr(ST+8*mt+2*j,2)}, v3 offset:{j*1024 + mt*256}")
    for mat in range(2):
        for g in range(4): k(f"ds_read_b128 {vr(CS+16*mat+4*g,4)}, v6 offset:{mat*512 + 32*g}")
    k("s_waitcnt lgkmcnt(8)")
    for mt in range(2):
        b = ST + 8 * mt
        for j in range(1, 4): k(f"v_add_f32 v{b}, v{b}, v{b+2*j}\nv_add_f32 v{b+1}, v{b+1}, v{b+2*j+1}")
    half_sum(k, [ST, ST+1, ST+8, ST+9], [10, 11, 12, 13])
    k("s_waitcnt lgkmcnt(0)")
    for mt in range(2):
        b = ST + 8 * mt; P = PRM + 4 * mt
        k(f"""
        v_mul_f32 v12, {fhex(-1.0/512)}, v{b}
        v_mul_f32 v13, {fhex(1.0/512)}, v{b+1}
        v_fma_f32 v13, -v12, v12, v13
        v_max_f32 v13, 0, v13
        v_add_f32 v{P+2}, {fhex(1e-5)}, v13
        v_rsq_f32 v13, v{P+2}
        s_nop 0
        v_mul_f32 v{P}, {fhex(GA)}, v13
        v_mul_f32 v{P+1}, v13, v13
        v_mul_f32 v{P+1}, v{P+1}, v{P}
        v_mul_f32 v{P+1}, {fhex(0.044715)}, v{P+1}
        """)
        for r in range(16):
            k(f"v_mul_f32 v{c.ACC+16*mt+r}, v12, v{CS+r}\nv_mul_f32 v{c.ACC+32+16*mt+r}, v12, v{CS+16+r}")
    gemm_main(k, c)
    RS = 272
    k(f"""
    s_barrier
    s_lshl_b32 s25, s23, 6
    v_add_u32 v10, s25, v5
    s_movk_i32 s25, {RS}
    v_mul_lo_u32 v10, v10, s25
    v_lshl_add_u32 v10, v7, 3, v10
    s_lshl_b32 s25, s24, 6
    v_add_u32 v10, s25, v10
    """)
    for mt in range(2):
        P = PRM + 4 * mt
        g0 = c.ACC + 16 * mt; u0 = c.ACC + 32 + 16 * mt
        T = c.FR[0]
        for r0 in range(0, 16, 8):
            rr = range(r0, r0 + 8)
            for r in rr: k(f"v_mul_f32 v{T+r-r0}, v{g0+r}, v{g0+r}")
            for r in rr: k(f"v_mul_f32 v{u0+r}, v{u0+r}, v{g0+r}")
            for r in rr: k(f"v_fma_f32 v{T+r-r0}, v{T+r-r0}, v{P+1}, v{P}")
            for r in rr: k(f"v_mul_f32 v{T+r-r0}, v{T+r-r0}, v{g0+r}")
            for r in rr: k(f"v_exp_f32 v{T+r-r0}, v{T+r-r0}")
            for r in rr: k(f"v_fma_f32 v{T+r-r0}, v{T+r-r0}, v{P+2}, v{P+2}")
            for r in rr: k(f"v_rcp_f32 v{T+r-r0}, v{T+r-r0}")
            for r in rr: k(f"v_mul_f32 v{u0+r}, v{u0+r}, v{T+r-r0}")
        for r in range(8): k(f"v_cvt_pk_bf16_f32 v{u0+r}, v{u0+2*r}, v{u0+2*r+1}")
        for g in range(4): k(f"ds_write_b64 v10, {vr(u0+2*g,2)} offset:{mt*32*RS + 16*g}")
    k(f"""
    v_lshrrev_b32 v3, 4, v0
    v_and_b32 v6, 15, v0
    s_movk_i32 s25, {RS}
    v_mul_lo_u32 v10, v3, s25
    v_lshl_add_u32 v10, v6, 4, v10
    s_movk_i32 s25, 3584
    v_mul_lo_u32 v3, v3, s25
    v_lshl_add_u32 v3, v6, 4, v3
    s_mul_i32 s31, s21, 3584
    s_lshl_b32 s25, s22, 1
    s_add_u32 s31, s31, s25
    s_add_u32 s31, s31, {WS_ACT}
    s_waitcnt lgkmcnt(0)
    s_barrier
    """)
    for p in range(4): k(f"ds_read_b128 {vr(c.ACC+4*p,4)}, v10 offset:{p*32*RS}")
    for p in range(4):
        k(f"s_waitcnt lgkmcnt({3-p})\nbuffer_store_dwordx4 {vr(c.ACC+4*p,4)}, v3, s[16:19], s31 offen")
        if p < 3: k(f"s_add_u32 s31, s31, {32*3584}")
    stamp_out(k, 12, "s[16:19]", 8)
    k.label(f"L_{L}_end")
    k("s_endpgm")
    return k

def emit(kerns, path):
    hdr = open(f"cdna_kernels/{NAME}.s.ref").read().split("; Override launch")[0]
    s = hdr
    for k in kerns:
        s += f"; @launch kernel={k.name} grid=({k.grid[0]},{k.grid[1]},{k.grid[2]}) block=({k.block[0]},{k.block[1]},{k.block[2]}) lds={k.lds}\n"
    s += '.amdgcn_target "amdgcn-amd-amdhsa--gfx950"\n.text\n'
    for k in kerns: s += k.text()
    s += '.section .rodata,"a"\n'
    for k in kerns: s += k.desc()
    open(path, "w").write(s)

if __name__ == "__main__":
    if len(sys.argv) > 1 and sys.argv[1] == "stamp":
        STAMP = True
        emit([gen_qkv(), gen_attn(), gen_res("k3"), gen_ffn(), gen_res("k5")], "full_stamp.s")
        sys.exit(0)
    emit([gen_qkv(), gen_attn(), gen_res("k3"), gen_ffn(), gen_res("k5")], "full.s")
```

```python
import sys
NAME = "sequential_preLN__grouped_kv_mqa__glu_gated_geglu__prompt"
WS_Q, WS_K, WS_VT, WS_KN, WS_CS, WS_ST, WS_O, WS_H, WS_ACT = 0, 0x200000, 0x210000, 0x220000, 0x221000, 0x230000, 0x300000, 0x500000, 0x800000
WS_SIZE = 268435456
WS_G, WS_CSQ, WS_XST = 0x1400000, 0x226000, 0x228000

class Kern:
    def __init__(self, name, grid, block, lds, nvgpr, nsgpr=100):
        self.name, self.grid, self.block, self.lds, self.nvgpr, self.nsgpr = name, grid, block, lds, nvgpr, nsgpr
        self.L = []
    def __call__(self, s):
        for line in s.split("\n"):
            line = line.strip()
            if line: self.L.append("    " + line)
    def label(self, s): self.L.append(s + ":")
    def text(self):
        return f".globl {self.name}\n.p2align 8\n.type {self.name},@function\n{self.name}:\n" + "\n".join(self.L) + "\n"
    def desc(self):
        nv = (self.nvgpr + 3) // 4 * 4
        return f""".p2align 6
.amdhsa_kernel {self.name}
  .amdhsa_next_free_vgpr {nv}
  .amdhsa_next_free_sgpr {self.nsgpr}
  .amdhsa_accum_offset {nv}
  .amdhsa_group_segment_fixed_size 0
  .amdhsa_kernarg_size 96
  .amdhsa_user_sgpr_count 2
  .amdhsa_user_sgpr_kernarg_segment_ptr 1
  .amdhsa_system_sgpr_workgroup_id_x 1
.end_amdhsa_kernel
"""
STAMP = False
AV = int(__import__('os').environ.get('AV', '1'))
FFNMAP = int(__import__('os').environ.get('FFNMAP', '0'))
SB0 = 70
def stamp(k, i):
    if STAMP: k(f"s_memtime s[{SB0+2*i}:{SB0+1+2*i}]")
def stamp_out(k, n, wsrd, nwaves, base=0x1000000):
    if not STAMP: return
    k("s_waitcnt vmcnt(0) lgkmcnt(0)")
    k(f"s_memtime s[{SB0+2*n}:{SB0+1+2*n}]\ns_waitcnt lgkmcnt(0)")
    k(f"s_mul_i32 s58, s2, {nwaves}\ns_add_u32 s58, s58, s20\ns_lshl_b32 s58, s58, 6\ns_add_u32 s58, s58, {base}\nv_mov_b32 v1, 0")
    for i in range(1, n+1):
        k(f"s_sub_u32 s59, s{SB0+2*i}, s{SB0}\nv_mov_b32 v2, s59\nbuffer_store_dword v2, v1, {wsrd}, s58 offen offset:{4*(i-1)}")
def vr(b, n): return f"v[{b}:{b+n-1}]"

def srd(k, d, ptr_s, size):
    k(f"s_mov_b32 s{d}, s{ptr_s}\ns_mov_b32 s{d+1}, s{ptr_s+1}\ns_mov_b32 s{d+2}, {size}\ns_mov_b32 s{d+3}, 0x00020000")

def gen_attn():
    VBASE = 65536; VRS = 4112; CBASE = VBASE + 18 * VRS
    CBASE = (CBASE + 15) // 16 * 16
    FLAG = CBASE + 4 * 4608
    LDS = FLAG + 64
    k = Kern("attn_kernel", (256, 1, 1), (512, 1, 1), LDS, 180)
    QA, QB = 8, 12; KF = [16, 20]; VF = [24, 32]; PA, PB = 40, 48
    CA, CB = 64, 80; SA, SB = 96, 112; OA, OB = 128, 144
    vL16, vK, vV = 1, 2, 3
    k(f"""
    s_cmp_ge_u32 s2, 256
    s_cbranch_scc1 L_attn_end
    s_load_dwordx2 s[4:5], s[0:1], 88
    s_load_dwordx4 s[32:35], s[0:1], 48
    s_load_dwordx2 s[60:61], s[0:1], 32
    s_load_dwordx2 s[62:63], s[0:1], 64
    """)
    stamp(k, 0)
    k(f"""
    v_and_b32 v4, 63, v0
    v_lshrrev_b32 v5, 6, v0
    v_lshlrev_b32 v{vL16}, 4, v4
    v_readfirstlane_b32 s20, v5
    v_and_b32 v6, 31, v0
    v_lshlrev_b32 v6, 5, v6
    v_bfe_u32 v7, v0, 5, 1
    v_lshl_or_b32 v6, v7, 4, v6       ; (l&31)*32 + h*16
    v_lshlrev_b32 v57, 2, v4
    s_waitcnt lgkmcnt(0)
    """)
    srd(k, 8, 4, WS_SIZE)
    k(f"""
    s_and_b32 s21, s20, 3
    s_lshr_b32 s22, s20, 2
    s_lshl_b32 s24, s2, 13
    s_lshl_b32 s23, s21, 11
    s_add_u32 s24, s24, s23
    s_mov_b32 s53, 0                  ; pass
    s_mov_b32 s52, 0
    s_mul_i32 s26, s21, 4608
    s_add_u32 s26, s26, {CBASE}
    v_add_u32 v59, s26, v{vL16}
    s_lshl_b32 s25, s21, 12           ; rb*4096
    s_mul_i32 s28, s21, {4*VRS}
    s_lshl_b32 s29, s21, 14
    s_cmp_eq_u32 s22, 0
    s_cbranch_scc1 L_attn_roleD
    s_mov_b32 s25, {WS_KN}
    s_lshl_b32 s26, s24, 1
    s_add_u32 s26, s26, {WS_G}
    s_mov_b32 s27, {WS_CSQ}
    v_lshlrev_b32 v58, 1, v6          ; (l&31)*64 + h*32
    s_lshr_b32 s28, s24, 7
    s_add_u32 s28, s28, {WS_XST}
    s_add_u32 s4, s4, s28
    s_addc_u32 s5, s5, 0
    s_load_dwordx4 s[64:67], s[4:5], 0
    buffer_load_dwordx4 {vr(SA,4)}, v58, s[8:11], s26 offen
    buffer_load_dwordx4 {vr(SA+4,4)}, v58, s[8:11], s26 offen offset:16
    buffer_load_dwordx4 {vr(SA+8,4)}, v58, s[8:11], s26 offen offset:2048
    buffer_load_dwordx4 {vr(SA+12,4)}, v58, s[8:11], s26 offen offset:2064
    buffer_load_dwordx4 {vr(SB,4)}, v58, s[8:11], s27 offen
    buffer_load_dwordx4 {vr(SB+4,4)}, v58, s[8:11], s27 offen offset:16
    buffer_load_dword v56, v57, s[8:11], s25 offen
    v_and_b32 v5, 255, v0
    v_lshlrev_b32 v5, 4, v5
    v_mov_b32 v60, 0x3f803f80
    v_mov_b32 v61, 0x3f803f80
    v_mov_b32 v62, 0x3f803f80
    v_mov_b32 v63, 0x3f803f80
    v_add_u32 v5, {VBASE + 16*VRS}, v5
    ds_write_b128 v5, v[60:63]
    v_mov_b32 v{PA}, 0
    v_mov_b32 v{PA+1}, 0
    v_mov_b32 v{PA+2}, 0
    v_mov_b32 v{PA+3}, 0
    ds_write_b128 v5, {vr(PA,4)} offset:{VRS}
    v_mov_b32 v5, {FLAG}
    ds_write_b32 v5, v{PA}
    s_waitcnt vmcnt(0) lgkmcnt(0)
    v_mov_b32 v58, {fhex(QSCALE)}
    v_mul_f32 v60, s67, v58
    v_mul_f32 v58, s65, v58
    """)
    for i in range(8):
        k(f"v_fma_f32 v{SA+i}, s64, v{SB+i}, v{SA+i}\nv_fma_f32 v{SA+8+i}, s66, v{SB+i}, v{SA+8+i}")
    for i in range(8):
        k(f"v_mul_f32 v{SA+i}, v{SA+i}, v58\nv_mul_f32 v{SA+8+i}, v{SA+8+i}, v60")
    for i in range(4):
        k(f"v_cvt_pk_bf16_f32 v{QA+i}, v{SA+2*i}, v{SA+2*i+1}\nv_cvt_pk_bf16_f32 v{QB+i}, v{SA+8+2*i}, v{SA+8+2*i+1}")
    k(f"""
    v_max_f32_dpp v56, v56, v56 quad_perm:[1,0,3,2] row_mask:0xf bank_mask:0xf
    v_mov_b32 v4, 0
    v_mov_b32 v5, 0
    v_max_f32_dpp v56, v56, v56 quad_perm:[2,3,0,1] row_mask:0xf bank_mask:0xf
    ds_write_b128 v59, {vr(QA,4)}
    ds_write_b128 v59, {vr(QB,4)} offset:1024
    v_dot2_f32_bf16 v4, v{QA}, v{QA}, v4
    v_dot2_f32_bf16 v5, v{QB}, v{QB}, v5
    v_max_f32_dpp v56, v56, v56 row_ror:4 row_mask:0xf bank_mask:0xf
    v_dot2_f32_bf16 v4, v{QA+1}, v{QA+1}, v4
    v_dot2_f32_bf16 v5, v{QB+1}, v{QB+1}, v5
    v_max_f32_dpp v56, v56, v56 row_ror:8 row_mask:0xf bank_mask:0xf
    v_dot2_f32_bf16 v4, v{QA+2}, v{QA+2}, v4
    v_dot2_f32_bf16 v5, v{QB+2}, v{QB+2}, v5
    v_mov_b32 v57, v56
    v_dot2_f32_bf16 v4, v{QA+3}, v{QA+3}, v4
    v_dot2_f32_bf16 v5, v{QB+3}, v{QB+3}, v5
    s_nop 1
    v_permlane16_swap_b32 v56, v57
    s_nop 1
    v_max_f32 v56, v56, v57
    v_mov_b32 v58, v4
    v_mov_b32 v57, v56
    v_mov_b32 v60, v5
    s_nop 1
    v_permlane32_swap_b32 v56, v57
    v_permlane32_swap_b32 v4, v58
    v_permlane32_swap_b32 v5, v60
    s_nop 1
    v_max_f32 v56, v56, v57
    v_add_f32 v4, v4, v58
    v_add_f32 v5, v5, v60
    v_mul_f32 v4, v4, v56
    v_mul_f32 v5, v5, v56
    v_sqrt_f32 v4, v4
    v_sqrt_f32 v5, v5
    s_nop 0
    ds_write_b64 v59, v[4:5] offset:2048
    s_waitcnt lgkmcnt(0)
    s_barrier
    """)
    stamp(k, 1)
    k("s_branch L_attn_pass")
    k.label("L_attn_roleD")
    XF = 160
    def kvdma(ph):
        for hh in range(2):
            for j in range(4):
                k(f"""
                s_add_u32 s26, s25, {hh*32768 + ph*16384 + j*1024}
                s_mov_b32 m0, s26
                s_add_u32 s27, s26, {WS_K}
                buffer_load_dwordx4 v{vL16}, s[8:11], s27 offen lds
                """)
        for d in range(4):
            for c in (ph, 2 + ph):
                k(f"""
                s_add_u32 s26, s28, {VBASE + d*VRS + c*1024}
                s_mov_b32 m0, s26
                s_add_u32 s27, s29, {WS_VT + d*4096 + c*1024}
                buffer_load_dwordx4 v{vL16}, s[8:11], s27 offen lds
                """)
    kvdma(0)
    k("s_waitcnt vmcnt(0)\ns_barrier")
    stamp(k, 1)
    k(f"""
    ds_read_b128 {vr(QA,4)}, v59
    ds_read_b128 {vr(QB,4)}, v59 offset:1024
    ds_read_b64 v[4:5], v59 offset:2048
    """)
    kvdma(1)
    k("s_waitcnt lgkmcnt(0)")
    srd(k, 40, 60, 524288); srd(k, 44, 62, 1835008)
    k(f"""
    s_lshl_b32 s38, s2, 2
    s_add_u32 s38, s38, s21           ; W
    s_lshl_b32 s39, s38, 9
    s_mul_i32 s50, s38, 1792
    buffer_load_dwordx4 v[176:179], v{vL16}, s[40:43], s39 offen
    buffer_load_dwordx4 v[176:179], v{vL16}, s[44:47], s50 offen
    buffer_load_dwordx4 v[176:179], v{vL16}, s[44:47], s50 offen offset:1024
    """)
    srd(k, 40, 32, 1835008); srd(k, 44, 34, 1835008)
    k(f"""
    s_cmp_ge_u32 s38, 896
    s_cbranch_scc1 L_attn_pass
    s_mov_b32 s52, 1
    s_cmp_ge_u32 s38, 448
    s_cselect_b32 s39, 448, 0
    s_cselect_b32 s48, 1792, 0
    s_cselect_b32 s40, s44, s40
    s_cselect_b32 s41, s45, s41
    s_sub_u32 s38, s38, s39           ; rem
    s_mul_i32 s39, s38, 9363
    s_lshr_b32 s39, s39, 16           ; rc
    s_mul_i32 s49, s39, 7
    s_sub_u32 s49, s38, s49           ; cb
    s_mul_i32 s50, s39, {8*3584}
    s_lshl_b32 s51, s49, 9
    s_add_u32 s50, s50, s51
    v_lshrrev_b32 v58, 1, v{vL16}
    """)
    for r in range(8):
        k(f"buffer_load_dwordx2 {vr(XF+2*r,2)}, v58, s[40:43], s50 offen")
        if r < 7: k(f"s_add_u32 s50, s50, 3584")
    k.label("L_attn_pass")
    if AV in (1, 4, 5): k("s_cmp_eq_u32 s22, 0\ns_cbranch_scc1 L_attn_np\ns_setprio 1"); k.label("L_attn_np")
    k(f"""
    s_lshl_b32 s26, s22, 15
    v_add_u32 v{vK}, s26, v{vL16}
    v_and_b32 v58, 31, v0
    v_min_u32 v58, 17, v58
    s_movk_i32 s27, {VRS}
    v_mul_lo_u32 v58, v58, s27
    v_lshl_add_u32 v58, v7, 4, v58
    s_lshl_b32 s26, s22, 11
    s_add_u32 s26, s26, {VBASE}
    v_add_u32 v{vV}, s26, v58
    ds_read_b128 {vr(KF[0],4)}, v{vK}
    ds_read_b128 {vr(KF[1],4)}, v{vK} offset:1024
    ds_read_b128 {vr(VF[0],4)}, v{vV}
    ds_read_b128 {vr(VF[0]+4,4)}, v{vV} offset:32
    """)
    for i in range(16): k(f"v_sub_f32 v{CA+i}, 0, v4\nv_sub_f32 v{CB+i}, 0, v5")
    for i in range(16): k(f"v_mov_b32 v{OA+i}, 0\nv_mov_b32 v{OB+i}, 0")
    for i in range(4): k(f"v_mov_b32 v{PB+4+i}, 0\nv_mov_b32 v{VF[1]+4+i}, 0")
    k(f"""
    s_waitcnt lgkmcnt(3)
    v_mfma_f32_32x32x16_bf16 {vr(SA,16)}, {vr(KF[0],4)}, {vr(QA,4)}, {vr(CA,16)}
    s_mov_b32 s30, 16
    s_nop 9
    """)
    def MF(D, A, B, C): k(f"v_mfma_f32_32x32x16_bf16 {vr(D,16)}, {vr(A,4)}, {vr(B,4)}, {vr(C,16)}")
    def unit(S, P, O, vf, prevPV2, nextQK, rdV=None, rdK=None):
        def E(a, b):
            for i in range(a, b): k(f"v_exp_f32 v{S+i}, v{S+i}")
        def C(a, b):
            for i in range(a, b): k(f"v_cvt_pk_bf16_f32 v{P+i}, v{S+2*i}, v{S+2*i+1}")
        if AV in (0, 1, 4, 5, 6, 7):
            E(0, 4); MF(*prevPV2)
            if rdV and AV != 4: k(rdV)
            E(4, 8); C(0, 4); MF(*nextQK)
            if rdK and AV != 4: k(rdK)
            E(8, 12); MF(O, vf, P, O); E(12, 16); C(4, 8)
        elif AV == 2:
            E(0, 5); MF(*prevPV2)
            if rdV: k(rdV)
            E(5, 8); C(0, 2); E(8, 10); MF(*nextQK)
            if rdK: k(rdK)
            C(2, 4); E(10, 14); C(4, 5); MF(O, vf, P, O); E(14, 16); C(5, 8)
        elif AV == 3:
            E(0, 2); C(0, 1); E(2, 4); C(1, 2); MF(*prevPV2)
            if rdV: k(rdV)
            E(4, 6); C(2, 3); E(6, 8); C(3, 4); MF(*nextQK)
            if rdK: k(rdK)
            E(8, 10); C(4, 5); E(10, 12); MF(O, vf, P, O); C(5, 6); E(12, 14); C(6, 7); E(14, 16); k("s_nop 0"); C(7, 8)
    k.label("L_attn_loop")
    k("s_cmp_lg_u32 s30, 9\ns_cbranch_scc1 L_attn_nb\ns_waitcnt vmcnt(0)\ns_barrier")
    k(f"""
    s_cmp_lg_u32 s52, 1
    s_cbranch_scc1 L_attn_nb
    s_mov_b32 s52, 0
    v_mov_b32 v58, 0x00003f80
    v_mov_b32 v59, 0x3f800000
    v_mov_b32 v60, 0
    v_mov_b32 v61, 0
    v_mov_b32 v62, 0
    v_mov_b32 v63, 0
    """)
    for r in range(8):
        k(f"""
        v_dot2_f32_bf16 v60, v{XF+2*r}, v58, v60
        v_dot2_f32_bf16 v61, v{XF+2*r}, v59, v61
        v_dot2_f32_bf16 v62, v{XF+2*r+1}, v58, v62
        v_dot2_f32_bf16 v63, v{XF+2*r+1}, v59, v63
        """)
    k(f"""
    s_lshl_b32 s51, s49, 8
    s_add_u32 s51, s51, s48
    s_lshl_b32 s51, s51, 2
    s_add_u32 s51, s51, {WS_CS}
    s_nop 2
    buffer_atomic_add_f32 v60, v{vL16}, s[8:11], s51 offen
    buffer_atomic_add_f32 v61, v{vL16}, s[8:11], s51 offen offset:4
    buffer_atomic_add_f32 v62, v{vL16}, s[8:11], s51 offen offset:8
    buffer_atomic_add_f32 v63, v{vL16}, s[8:11], s51 offen offset:12
    """)
    k.label("L_attn_nb")
    for par in range(2):
        if AV == 6:
            k(f"s_setprio {par}")
        if AV == 7:
            k(f"s_add_u32 s31, s22, {par}\ns_bitcmp1_b32 s31, 0\ns_cbranch_scc1 L_attn_p{par}\ns_setprio 0\ns_branch L_attn_q{par}")
            k.label(f"L_attn_p{par}"); k("s_setprio 1"); k.label(f"L_attn_q{par}")
        k("s_waitcnt lgkmcnt(0)")
        unit(SA, PA, OA, VF[par], (OB, VF[1-par]+4, PB+4, OB), (SB, KF[par], QB, CB),
             rdV=f"ds_read_b128 {vr(VF[1-par],4)}, v{vV} offset:{(1+par)*64}\nds_read_b128 {vr(VF[1-par]+4,4)}, v{vV} offset:{(1+par)*64+32}",
             rdK=f"ds_read_b128 {vr(KF[par],4)}, v{vK} offset:{(2+par)*1024}")
        unit(SB, PB, OB, VF[par], (OA, VF[par]+4, PA+4, OA), (SA, KF[1-par], QA, CA))
    k(f"""
    v_add_u32 v{vK}, 2048, v{vK}
    v_add_u32 v{vV}, 128, v{vV}
    s_sub_u32 s30, s30, 1
    s_cmp_lg_u32 s30, 0
    s_cbranch_scc1 L_attn_loop
    v_mfma_f32_32x32x16_bf16 {vr(OB,16)}, {vr(VF[1]+4,4)}, {vr(PB+4,4)}, {vr(OB,16)}
    """)
    stamp(k, 2)
    k(f"""
    s_waitcnt lgkmcnt(0)
    s_nop 15
    s_mul_i32 s26, s21, 4608
    s_add_u32 s26, s26, {CBASE}
    v_add_u32 v60, s26, v{vL16}
    v_lshrrev_b32 v61, 2, v{vL16}
    v_add_u32 v61, s26, v61
    v_mov_b32 v62, {FLAG}
    s_cmp_eq_u32 s22, 0
    s_cbranch_scc1 L_attn_lo
    ds_write_b128 v60, {vr(OA,4)}
    ds_write_b128 v60, {vr(OA+4,4)} offset:1024
    ds_write_b32 v61, v{OA+8} offset:2048
    ds_write_b128 v60, {vr(OB,4)} offset:2304
    ds_write_b128 v60, {vr(OB+4,4)} offset:3328
    ds_write_b32 v61, v{OB+8} offset:4352
    s_waitcnt lgkmcnt(0)
    s_barrier
    s_branch L_attn_join
    """)
    k.label("L_attn_lo")
    k(f"""
    s_barrier
    ds_read_b128 {vr(SA,4)}, v60
    ds_read_b128 {vr(SA+4,4)}, v60 offset:1024
    ds_read_b32 v{SA+8}, v61 offset:2048
    ds_read_b128 {vr(SB,4)}, v60 offset:2304
    ds_read_b128 {vr(SB+4,4)}, v60 offset:3328
    ds_read_b32 v{SB+8}, v61 offset:4352
    s_waitcnt lgkmcnt(0)
    """)
    for i in range(9): k(f"v_add_f32 v{OA+i}, v{OA+i}, v{SA+i}\nv_add_f32 v{OB+i}, v{OB+i}, v{SB+i}")
    k(f"""
    v_mov_b32 v58, v{OA+8}
    v_mov_b32 v59, v{OB+8}
    s_mov_b32 s26, 0x1f800000         ; 2^-64
    s_mov_b32 s27, 0x5f800000         ; 2^64
    v_permlane32_swap_b32 v{OA+8}, v58
    v_permlane32_swap_b32 v{OB+8}, v59
    s_nop 1
    v_cmp_nle_f32 s[54:55], s26, v{OA+8}
    v_cmp_nle_f32 s[56:57], s26, v{OB+8}
    v_cmp_nge_f32 vcc, s27, v{OA+8}
    s_or_b64 s[54:55], s[54:55], s[56:57]
    s_or_b64 s[54:55], s[54:55], vcc
    v_cmp_nge_f32 vcc, s27, v{OB+8}
    v_mov_b32 v63, 1
    s_or_b64 s[54:55], s[54:55], vcc
    s_cmp_eq_u64 s[54:55], 0
    s_cbranch_scc1 L_attn_join
    ds_write_b32 v62, v63
    s_waitcnt lgkmcnt(0)
    """)
    k.label("L_attn_join")
    k(f"""
    s_barrier
    ds_read_b32 v63, v62
    s_waitcnt lgkmcnt(0)
    v_readfirstlane_b32 s26, v63
    s_cmp_lg_u32 s53, 0
    s_cselect_b32 s26, 0, s26
    s_cmp_lg_u32 s26, 0
    s_cbranch_scc1 L_attn_slow
    """)
    stamp_out(k, 3, "s[8:11]", 8, base=0x1100000)
    k(f"""
    s_cmp_lg_u32 s22, 0
    s_cbranch_scc1 L_attn_end
    v_rcp_f32 v58, v{OA+8}
    v_rcp_f32 v59, v{OB+8}
    s_nop 0
    """)
    for i in range(8): k(f"v_mul_f32 v{OA+i}, v{OA+i}, v58\nv_mul_f32 v{OB+i}, v{OB+i}, v59")
    for i in range(4): k(f"v_cvt_pk_bf16_f32 v{PA+i}, v{OA+2*i}, v{OA+2*i+1}\nv_cvt_pk_bf16_f32 v{PB+i}, v{OB+2*i}, v{OB+2*i+1}")
    k(f"""
    v_and_b32 v6, 31, v0
    v_lshlrev_b32 v6, 5, v6
    v_lshl_or_b32 v6, v7, 3, v6       ; row*32 + 8h
    s_add_u32 s24, s24, {WS_O}
    buffer_store_dwordx2 {vr(PA,2)}, v6, s[8:11], s24 offen
    buffer_store_dwordx2 {vr(PA+2,2)}, v6, s[8:11], s24 offen offset:16
    buffer_store_dwordx2 {vr(PB,2)}, v6, s[8:11], s24 offen offset:1024
    buffer_store_dwordx2 {vr(PB+2,2)}, v6, s[8:11], s24 offen offset:1040
    s_branch L_attn_end
    """)
    k.label("L_attn_slow")
    k(f"""
    s_mov_b32 s53, 1
    s_lshl_b32 s26, s22, 15
    v_add_u32 v{vK}, s26, v{vL16}
    v_mov_b32 v4, 0xff800000
    v_mov_b32 v5, 0xff800000
    s_mov_b32 s30, 32
    """)
    k.label("L_attn_mloop")
    k(f"""
    ds_read_b128 {vr(KF[0],4)}, v{vK}
    v_add_u32 v{vK}, 1024, v{vK}
    s_waitcnt lgkmcnt(0)
    v_mfma_f32_32x32x16_bf16 {vr(SA,16)}, {vr(KF[0],4)}, {vr(QA,4)}, 0
    v_mfma_f32_32x32x16_bf16 {vr(SB,16)}, {vr(KF[0],4)}, {vr(QB,4)}, 0
    s_nop 15
    s_nop 7
    """)
    for i in range(8): k(f"v_max3_f32 v4, v4, v{SA+2*i}, v{SA+2*i+1}\nv_max3_f32 v5, v5, v{SB+2*i}, v{SB+2*i+1}")
    k(f"""
    s_sub_u32 s30, s30, 1
    s_cmp_lg_u32 s30, 0
    s_cbranch_scc1 L_attn_mloop
    v_mov_b32 v58, v4
    v_mov_b32 v59, v5
    s_nop 1
    v_permlane32_swap_b32 v4, v58
    v_permlane32_swap_b32 v5, v59
    s_nop 1
    v_max_f32 v4, v4, v58
    v_max_f32 v5, v5, v59
    s_lshl_b32 s26, s22, 9            ; kh*512
    v_add_u32 v58, s26, v61
    s_sub_u32 s27, 512, s26
    v_add_u32 v59, s27, v61
    ds_write_b32 v58, v4
    ds_write_b32 v58, v5 offset:256
    s_waitcnt lgkmcnt(0)
    s_barrier
    ds_read_b32 v56, v59
    ds_read_b32 v57, v59 offset:256
    s_waitcnt lgkmcnt(0)
    v_max_f32 v4, v4, v56
    v_max_f32 v5, v5, v57
    s_barrier
    s_branch L_attn_pass
    """)
    k.label("L_attn_end")
    k("s_endpgm")
    return k

QSCALE = 0.25 * 1.4426950408889634
def fhex(x):
    import struct
    return "0x%08x" % struct.unpack("<I", struct.pack("<f", x))[0]

def lane_consts(k):
    k("""
    v_and_b32 v4, 63, v0
    v_lshrrev_b32 v6, 6, v0
    v_and_b32 v5, 31, v0
    v_readfirstlane_b32 s20, v6
    v_bfe_u32 v7, v0, 5, 1
    """)

def tr_addr(k, vdst, rw_shift, swz_mode):
    k(f"""
    v_bfe_u32 v10, v0, 2, 2           ; i>>2
    v_lshl_add_u32 v11, v7, 3, v10    ; row = 8h + (i>>2)
    v_lshlrev_b32 v11, {rw_shift}, v11
    v_bfe_u32 v12, v0, 4, 1           ; g&1
    v_bfe_u32 v13, v0, 1, 1           ; (i&3)>>1
    v_lshl_add_u32 v12, v12, 1, v13   ; chunk
    """)
    if swz_mode == 'r128':
        k("v_bfe_u32 v13, v0, 3, 1\nv_lshlrev_b32 v13, 2, v13\nv_xor_b32 v12, v12, v13")
    elif swz_mode == 'r256':
        k("v_lshlrev_b32 v13, 2, v10\nv_xor_b32 v12, v12, v13")
    k(f"""
    v_lshl_add_u32 v11, v12, 4, v11
    v_and_b32 v13, 1, v0
    v_lshl_add_u32 v{vdst}, v13, 3, v11
    """)

class G:
    pass

def log2(x):
    r = x.bit_length() - 1
    assert 1 << r == x
    return r

def gemm_setup(k, c):
    NW = c.WM * c.WN
    c.RX = c.KC * 2; c.LX = c.RX // 16; c.RPI = 64 // c.LX
    c.RW = c.BN * 2; c.CW = c.RW // 16; c.RPW = 64 // c.CW
    c.BM = c.WM * c.MT * 32
    c.NXI = c.BM * c.RX // 1024; c.NWI = c.KC * c.RW // 1024
    assert c.NXI % NW == 0 and c.NWI % NW == 0, (c.NXI, c.NWI)
    c.XB = c.BM * c.RX; c.WB = c.KC * c.RW
    c.SB = c.XB + c.NMAT * c.WB
    c.KS = c.KC // 16; c.NST = c.K // c.KC
    c.DPS = (c.NXI + c.NMAT * c.NWI) // NW
    lw = log2(c.WM)
    k(f"s_and_b32 s23, s20, {c.WM-1}\ns_lshr_b32 s24, s20, {lw}")
    llx = log2(c.LX)
    k(f"v_lshrrev_b32 v10, {llx}, v4\nv_and_b32 v11, {c.LX-1}, v4\nv_lshrrev_b32 v12, 4, v4")
    if c.LX == 16:
        k("s_lshl_b32 s25, s20, 2\nv_add_u32 v12, s25, v12\nv_and_b32 v12, 15, v12")
    else:
        assert c.LX == 8
        k("s_lshl_b32 s25, s20, 2\nv_add_u32 v12, s25, v12\nv_and_b32 v12, 7, v12")
    k(f"v_xor_b32 v11, v11, v12\ns_mov_b32 s25, {c.ldx}\nv_mul_lo_u32 v10, v10, s25\nv_lshl_add_u32 v{c.vDX}, v11, 4, v10")
    lcw = log2(c.CW)
    k(f"v_lshrrev_b32 v10, {lcw}, v4\nv_and_b32 v11, {c.CW-1}, v4")
    if c.RW == 128: k("v_bfe_u32 v12, v4, 4, 1\nv_lshlrev_b32 v12, 2, v12\nv_xor_b32 v11, v11, v12")
    elif c.RW == 256: k("v_bfe_u32 v12, v4, 4, 2\nv_lshlrev_b32 v12, 2, v12\nv_xor_b32 v11, v11, v12")
    else: assert False
    k(f"s_mov_b32 s25, {c.ldw}\nv_mul_lo_u32 v10, v10, s25\nv_lshl_add_u32 v{c.vDW}, v11, 4, v10")
    k(f"""
    s_mul_i32 s25, s20, {c.RPI}
    s_add_u32 s25, s25, s21
    s_mul_i32 s26, s25, {c.ldx}
    s_add_u32 s26, s26, {c.xbase}
    s_mul_i32 s27, s20, {c.RPW * c.ldw}
    s_lshl_b32 s25, s22, 1
    s_add_u32 s27, s27, s25
    s_lshl_b32 s28, s20, 10
    """)
    gemm_prologue(k, c, c.NPRE)
    if c.LX == 16: k("v_and_b32 v10, 15, v5")
    else: k("v_bfe_u32 v10, v5, 1, 3")
    k(f"""
    v_xor_b32 v10, v10, v7
    v_lshlrev_b32 v10, 4, v10
    v_lshl_add_u32 v10, v5, {log2(c.RX)}, v10
    s_mul_i32 s25, s23, {c.MT * 32 * c.RX}
    """)
    for ks in range(c.KS):
        k(f"v_xor_b32 v{c.vXb+ks}, {32*ks}, v10\nv_add_u32 v{c.vXb+ks}, s25, v{c.vXb+ks}")
    tr_addr(k, 14, log2(c.RW), 'r128' if c.RW == 128 else 'r256')
    for nt in range(c.NT):
        k(f"s_mul_i32 s25, s24, {c.NT}\ns_add_u32 s25, s25, {nt}\ns_lshl_b32 s25, s25, 6\nv_xor_b32 v{c.vWb+nt}, s25, v14\nv_add_u32 v{c.vWb+nt}, {c.XB}, v{c.vWb+nt}")

def gemm_dma_list(c, st):
    NW = c.WM * c.WN
    slot = (st % c.R) * c.SB
    k0 = st * c.KC
    out = []
    for j in range(c.NXI // NW):
        out.append(f"""
        s_add_u32 s38, s28, {slot + j*NW*1024}
        s_mov_b32 m0, s38
        s_add_u32 s39, s26, {j*NW*c.RPI*c.ldx + k0*2}
        buffer_load_dwordx4 v{c.vDX}, {c.xsrd}, s39 offen lds
        """)
    for mat in range(c.NMAT):
        for j in range(c.NWI // NW):
            out.append(f"""
            s_add_u32 s38, s28, {slot + c.XB + mat*c.WB + j*NW*1024}
            s_mov_b32 m0, s38
            s_add_u32 s39, s27, {(j*NW*c.RPW + k0)*c.ldw}
            buffer_load_dwordx4 v{c.vDW}, {c.wsrd[mat]}, s39 offen lds
            """)
    return out

def gemm_prologue(k, c, npre=1):
    c.Q = [(st, a) for st in range(c.NST) for a in gemm_dma_list(c, st)]
    c.log = []
    while c.Q and c.Q[0][0] < npre:
        st, a = c.Q.pop(0); k(a); c.log.append(st)

def gemm_main(k, c, kstep_hook=None, per_ks=2):
    NST, R = c.NST, c.R
    nfr = c.MT + 2 * c.NMAT * c.NT
    stag = getattr(c, 'STAG', False)
    stamp(k, 1)
    def mfmas(ks):
        b = c.FR[ks % 2]
        for mat in range(c.NMAT):
            for nt in range(c.NT):
                wf = b + 4*c.MT + 4*(mat*c.NT + nt)
                for mt in range(c.MT):
                    a = c.ACC + 16 * ((mat*c.NT + nt) * c.MT + mt)
                    k(f"v_mfma_f32_32x32x16_bf16 {vr(a,16)}, {vr(wf,4)}, {vr(b+4*mt,4)}, {vr(a,16)}")
        if kstep_hook: kstep_hook(b)
    for st in range(NST):
        last = max(i for i, x in enumerate(c.log) if x == st)
        assert c.log.count(st) == c.DPS
        slot = (st % R) * c.SB
        for ks in range(c.KS): k(f"v_add_u32 v{c.vXa+ks}, {slot}, v{c.vXb+ks}")
        for nt in range(c.NT): k(f"v_add_u32 v{c.vWa+nt}, {slot}, v{c.vWb+nt}")
        k(f"s_waitcnt vmcnt({len(c.log) - 1 - last}) lgkmcnt(0)\ns_barrier")
        if st < 9: stamp(k, 2 + st)
        def rd(ks):
            b = c.FR[ks % 2]
            for mt in range(c.MT):
                k(f"ds_read_b128 {vr(b+4*mt,4)}, v{c.vXa+ks} offset:{mt*32*c.RX}")
            b += 4 * c.MT
            for mat in range(c.NMAT):
                for nt in range(c.NT):
                    for t in range(2):
                        k(f"ds_read_b64_tr_b16 {vr(b+2*t,2)}, v{c.vWa+nt} offset:{mat*c.WB + ks*16*c.RW + t*4*c.RW}")
                    b += 4
        nslots = c.KS if st > 0 else c.KS - 1
        if stag:
            D = []
            while c.Q and c.Q[0][0] <= st + R - 1: D.append(c.Q.pop(0))
            for s2, a in D: c.log.append(s2)
        sl = [0]
        def dma_slot():
            i = sl[0]; sl[0] += 1
            if stag:
                h0 = nslots // 2
                g = 0 if i < h0 else 1
                cntg = h0 if g == 0 else nslots - h0
                j = i if g == 0 else i - h0
                per = (len(D) + cntg - 1) // cntg
                part = D[j*per:(j+1)*per]
                if part:
                    lab = f"L_{k.name}_sg_{st}_{i}"
                    k(f"s_cmp_lg_u32 s33, {g}\ns_cbranch_scc1 {lab}")
                    for s2, a in part: k(a)
                    k.label(lab)
            else:
                n = 0
                while c.Q and c.Q[0][0] <= st + R - 1 and (n < per_ks or (i == nslots - 1 and c.Q[0][0] == st + 1)):
                    s2, a = c.Q.pop(0); k(a); c.log.append(s2); n += 1
        rd(0)
        if st > 0:
            mfmas(c.KS - 1); dma_slot()
        for ks in range(c.KS - 1):
            rd(ks + 1); k(f"s_waitcnt lgkmcnt({nfr})")
            mfmas(ks); dma_slot()
    k("s_waitcnt lgkmcnt(0)")
    mfmas(c.KS - 1)
    k("s_nop 15")
    stamp(k, 11)

def half_sum(k, regs, tmps):
    for r, t in zip(regs, tmps): k(f"v_mov_b32 v{t}, v{r}")
    k("s_nop 1")
    for r, t in zip(regs, tmps): k(f"v_permlane32_swap_b32 v{r}, v{t}")
    k("s_nop 1")
    for r, t in zip(regs, tmps): k(f"v_add_f32 v{r}, v{r}, v{t}")

def colsum_part(k, L, XF):
    srd(k, 40, 32, 1835008); srd(k, 44, 34, 1835008)
    k(f"""
    s_lshl_b32 s38, s2, 2
    s_add_u32 s38, s38, s20           ; W
    s_cmp_ge_u32 s38, 896
    s_cbranch_scc1 L_{L}_end
    s_cmp_ge_u32 s38, 448
    s_cselect_b32 s39, 448, 0
    s_cselect_b32 s48, 1792, 0
    s_cselect_b32 s40, s44, s40
    s_cselect_b32 s41, s45, s41
    s_sub_u32 s38, s38, s39           ; rem
    s_mul_i32 s39, s38, 9363
    s_lshr_b32 s39, s39, 16           ; rc
    s_mul_i32 s49, s39, 7
    s_sub_u32 s49, s38, s49           ; cb
    s_mul_i32 s50, s39, {8*3584}
    s_lshl_b32 s51, s49, 9
    s_add_u32 s50, s50, s51
    v_lshlrev_b32 v10, 3, v4
    """)
    for r in range(8):
        k(f"buffer_load_dwordx2 {vr(XF+2*r,2)}, v10, s[40:43], s50 offen")
        if r < 7: k(f"s_add_u32 s50, s50, 3584")
    k(f"""
    v_mov_b32 v12, 0x00003f80
    v_mov_b32 v13, 0x3f800000
    v_mov_b32 v16, 0
    v_mov_b32 v17, 0
    v_mov_b32 v18, 0
    v_mov_b32 v19, 0
    s_waitcnt vmcnt(0)
    """)
    for r in range(8):
        k(f"""
        v_dot2_f32_bf16 v16, v{XF+2*r}, v12, v16
        v_dot2_f32_bf16 v17, v{XF+2*r}, v13, v17
        v_dot2_f32_bf16 v18, v{XF+2*r+1}, v12, v18
        v_dot2_f32_bf16 v19, v{XF+2*r+1}, v13, v19
        """)
    k(f"""
    s_lshl_b32 s51, s49, 8
    s_add_u32 s51, s51, s48
    s_lshl_b32 s51, s51, 2
    s_add_u32 s51, s51, {WS_CS}
    v_lshlrev_b32 v10, 4, v4
    s_nop 2
    buffer_atomic_add_f32 v16, v10, s[16:19], s51 offen
    buffer_atomic_add_f32 v17, v10, s[16:19], s51 offen offset:4
    buffer_atomic_add_f32 v18, v10, s[16:19], s51 offen offset:8
    buffer_atomic_add_f32 v19, v10, s[16:19], s51 offen offset:12
    """)

def cfg64(K, KC, R, ldx, xbase, xsrd, ldw):
    c = G()
    c.WM, c.WN, c.MT, c.NT, c.NMAT, c.BN = 2, 2, 1, 1, 1, 64
    c.K, c.KC, c.R, c.ldx, c.xbase, c.xsrd, c.ldw, c.wsrd = K, KC, R, ldx, xbase, xsrd, ldw, ["s[12:15]"]
    c.vDX, c.vDW = 1, 2
    c.vXb, c.vXa, c.vWb, c.vWa = 16, 24, 32, 33
    c.FR = [36, 44]
    c.ACC = 64
    c.NPRE = int(__import__('os').environ.get('NPRE', '1'))
    return c

def map64(k):
    k("""
    s_and_b32 s21, s2, 7
    s_lshl_b32 s21, s21, 2
    s_lshr_b32 s22, s2, 6
    s_add_u32 s21, s21, s22
    s_lshl_b32 s21, s21, 6
    s_bfe_u32 s22, s2, 0x30003
    s_lshl_b32 s22, s22, 6
    """)

def gen_res(kind, KC=128, R=4):
    k3 = kind == 'k3'
    name = "wo_kernel" if k3 else "down_kernel"
    L = name
    if k3: c = cfg64(512, KC, R, 1024, WS_O, "s[16:19]", 1024)
    else: c = cfg64(1792, KC, R, 3584, WS_ACT, "s[16:19]", 1024)
    SB = 64 * KC * 2 * 2
    k = Kern(name, (256, 1, 1), (256, 1, 1), SB * R, 112)
    RES = 80; ACC = c.ACC; vSum, vSq, ONES = 8, 9, 15
    k(f"s_cmp_ge_u32 s2, 256\ns_cbranch_scc1 L_{L}_end")
    if k3:
        k("s_load_dwordx2 s[4:5], s[0:1], 0\ns_load_dwordx2 s[6:7], s[0:1], 32\ns_load_dwordx4 s[32:35], s[0:1], 48\ns_load_dwordx2 s[36:37], s[0:1], 88")
    else:
        k("s_load_dwordx4 s[4:7], s[0:1], 64\ns_load_dwordx2 s[36:37], s[0:1], 88")
    stamp(k, 0)
    lane_consts(k)
    map64(k)
    k("s_waitcnt lgkmcnt(0)")
    if k3:
        srd(k, 8, 4, 2097152); srd(k, 12, 6, 524288)
    else:
        srd(k, 12, 4, 1835008); srd(k, 8, 6, 2097152)
    srd(k, 16, 36, WS_SIZE)
    k(f"""
    s_lshl_b32 s31, s21, 10
    s_lshl_b32 s25, s22, 1
    s_add_u32 s31, s31, s25
    v_lshrrev_b32 v3, 3, v0
    v_and_b32 v6, 7, v0
    v_lshlrev_b32 v3, 10, v3
    v_lshl_add_u32 v3, v6, 4, v3
    """)
    if k3:
        k(f"s_add_u32 s25, s31, 32768\nbuffer_load_dwordx4 {vr(RES,4)}, v3, s[8:11], s31 offen\nbuffer_load_dwordx4 {vr(RES+4,4)}, v3, s[8:11], s25 offen")
    else:
        k(f"s_add_u32 s25, s31, {WS_H}\nbuffer_load_dwordx4 {vr(RES,4)}, v3, s[16:19], s25 offen")
        k(f"s_add_u32 s25, s31, {WS_H+32768}\nbuffer_load_dwordx4 {vr(RES+4,4)}, v3, s[16:19], s25 offen")
    gemm_setup(k, c)
    for i in range(16): k(f"v_mov_b32 v{ACC+i}, 0")
    gemm_main(k, c)
    RS = 272
    k(f"""
    s_lshl_b32 s25, s23, 5
    v_add_u32 v10, s25, v5
    s_movk_i32 s25, {RS}
    v_mul_lo_u32 v10, v10, s25
    v_lshl_add_u32 v10, v7, 4, v10
    s_lshl_b32 s25, s24, 7
    v_add_u32 v10, s25, v10
    """)
    for g in range(4): k(f"ds_write_b128 v10, {vr(ACC+4*g,4)} offset:{32*g}")
    k(f"""
    v_lshrrev_b32 v10, 3, v0
    s_movk_i32 s25, {RS}
    v_mul_lo_u32 v10, v10, s25
    v_lshl_add_u32 v10, v6, 5, v10
    s_waitcnt lgkmcnt(0)
    s_barrier
    """)
    for p in range(2):
        k(f"ds_read_b128 {vr(ACC+8*p,4)}, v10 offset:{p*32*RS}\nds_read_b128 {vr(ACC+8*p+4,4)}, v10 offset:{p*32*RS+16}")
    k("s_waitcnt vmcnt(0) lgkmcnt(0)")
    for r in range(8):
        k(f"v_lshlrev_b32 v12, 16, v{RES+r}\nv_and_b32 v13, 0xffff0000, v{RES+r}")
        k(f"v_add_f32 v{ACC+2*r}, v{ACC+2*r}, v12\nv_add_f32 v{ACC+2*r+1}, v{ACC+2*r+1}, v13")
    for r in range(8): k(f"v_cvt_pk_bf16_f32 v{ACC+r}, v{ACC+2*r}, v{ACC+2*r+1}")
    if k3:
        k(f"s_add_u32 s25, s31, {WS_H}\nbuffer_store_dwordx4 {vr(ACC,4)}, v3, s[16:19], s25 offen")
        k(f"s_add_u32 s25, s31, {WS_H+32768}\nbuffer_store_dwordx4 {vr(ACC+4,4)}, v3, s[16:19], s25 offen")
        S = RES
        for i in range(4): k(f"v_mov_b32 v{S+i}, 0")
        k(f"v_mov_b32 v{ONES}, 0x3f803f80")
        for r in range(4):
            for p in range(2):
                k(f"v_dot2_f32_bf16 v{S+2*p}, v{ACC+4*p+r}, v{ONES}, v{S+2*p}\nv_dot2_f32_bf16 v{S+2*p+1}, v{ACC+4*p+r}, v{ACC+4*p+r}, v{S+2*p+1}")
        k("s_nop 2")
        for dpp in ("quad_perm:[1,0,3,2]", "quad_perm:[2,3,0,1]", "row_half_mirror"):
            for i in range(4): k(f"v_add_f32_dpp v{S+i}, v{S+i}, v{S+i} {dpp} row_mask:0xf bank_mask:0xf")
            k("s_nop 1")
        k(f"""
        v_lshrrev_b32 v10, 3, v0
        v_lshlrev_b32 v10, 3, v10         ; row*8
        s_lshl_b32 s38, s21, 3            ; row0*8
        s_lshl_b32 s39, s22, 8            ; cb*16384
        s_add_u32 s38, s38, s39
        s_add_u32 s38, s38, {WS_ST}
        buffer_store_dwordx2 {vr(S,2)}, v10, s[16:19], s38 offen
        buffer_store_dwordx2 {vr(S+2,2)}, v10, s[16:19], s38 offen offset:256
        """)
        stamp_out(k, 12, "s[16:19]", 4)
    else:
        k(f"buffer_store_dwordx4 {vr(ACC,4)}, v3, s[8:11], s31 offen")
        k(f"s_add_u32 s25, s31, 32768\nbuffer_store_dwordx4 {vr(ACC+4,4)}, v3, s[8:11], s25 offen")
        stamp_out(k, 12, "s[16:19]", 4)
    k.label(f"L_{L}_end")
    k("s_endpgm")
    return k

def gen_qkv(KC=64, R=5):
    name = "qkv_kernel"; L = name
    c = cfg64(512, KC, R, 1024, 0, "s[8:11]", 1024)
    k = Kern(name, (320, 1, 1), (256, 1, 1), 81920, 128)
    ACC = c.ACC; ACC1 = 80; ONES = 96; vS = 100
    k(f"s_cmp_ge_u32 s2, 320\ns_cbranch_scc1 L_{L}_end")
    k("s_load_dwordx4 s[4:7], s[0:1], 0\ns_load_dwordx4 s[32:35], s[0:1], 16\ns_load_dwordx2 s[36:37], s[0:1], 88")
    stamp(k, 0)
    lane_consts(k)
    k("s_waitcnt lgkmcnt(0)")
    srd(k, 8, 4, 2097152); srd(k, 12, 6, 524288); srd(k, 16, 36, WS_SIZE)
    for i in range(16): k(f"v_mov_b32 v{ACC+i}, 0\nv_mov_b32 v{ACC1+i}, 0")
    for i in range(4): k(f"v_mov_b32 v{ONES+i}, 0x3f803f80")
    for i in range(8): k(f"v_mov_b32 v{vS+i}, 0")
    def hook(b):
        k(f"v_mfma_f32_32x32x16_bf16 {vr(ACC1,16)}, {vr(b+4,4)}, {vr(ONES,4)}, {vr(ACC1,16)}")
        U = 108
        for r in range(4):
            k(f"v_lshlrev_b32 v{U+2*r}, 16, v{b+r}\nv_and_b32 v{U+2*r+1}, 0xffff0000, v{b+r}")
        for r in range(4):
            a = vS + 2 * (r & 1)
            k(f"v_pk_add_f32 {vr(a,2)}, {vr(a,2)}, {vr(U+2*r,2)}")
            k(f"v_pk_fma_f32 {vr(a+4,2)}, {vr(U+2*r,2)}, {vr(U+2*r,2)}, {vr(a+4,2)}")
    def ln_stats(scale):
        k(f"""
        v_add_f32 v{vS}, v{vS}, v{vS+1}
        v_add_f32 v{vS+2}, v{vS+2}, v{vS+3}
        v_add_f32 v{vS+4}, v{vS+4}, v{vS+5}
        v_add_f32 v{vS+6}, v{vS+6}, v{vS+7}
        v_add_f32 v{vS}, v{vS}, v{vS+2}
        v_add_f32 v{vS+1}, v{vS+4}, v{vS+6}
        """)
        half_sum(k, [vS, vS+1], [12, 13])
        k(f"""
        v_mul_f32 v12, {fhex(-1.0/512)}, v{vS}
        v_mul_f32 v13, {fhex(1.0/512)}, v{vS+1}
        v_fma_f32 v13, -v12, v12, v13
        v_max_f32 v13, 0, v13
        v_add_f32 v13, {fhex(1e-5)}, v13
        v_rsq_f32 v13, v13
        s_nop 0
        v_mul_f32 v13, {fhex(scale)}, v13
        """)
        for r in range(16):
            k(f"v_fma_f32 v{ACC+r}, v12, v{ACC1+r}, v{ACC+r}\nv_mul_f32 v{ACC+r}, v{ACC+r}, v13")
        for r in range(8): k(f"v_cvt_pk_bf16_f32 v{ACC+r}, v{ACC+2*r}, v{ACC+2*r+1}")
    k(f"s_cmp_lt_u32 s2, 64\ns_cbranch_scc1 L_{L}_kv\ns_sub_u32 s2, s2, 64")
    map64(k)
    gemm_setup(k, c)
    k("s_or_b32 s45, s21, s23")
    cnt = [0]
    def hookq(b):
        cnt[0] += 1
        lab = f"L_{L}_cs{cnt[0]}"
        k(f"s_cmp_lg_u32 s45, 0\ns_cbranch_scc1 {lab}")
        k(f"v_mfma_f32_32x32x16_bf16 {vr(ACC1,16)}, {vr(b+4,4)}, {vr(ONES,4)}, {vr(ACC1,16)}")
        k.label(lab)
    gemm_main(k, c, kstep_hook=hookq)
    RS = 272
    k(f"""
    s_lshl_b32 s25, s23, 5
    v_add_u32 v10, s25, v5
    s_movk_i32 s25, {RS}
    v_mul_lo_u32 v10, v10, s25
    v_lshl_add_u32 v10, v7, 4, v10
    s_lshl_b32 s25, s24, 7
    v_add_u32 v10, s25, v10
    """)
    for g in range(4): k(f"ds_write_b128 v10, {vr(ACC+4*g,4)} offset:{32*g}")
    k(f"""
    v_lshrrev_b32 v3, 4, v0
    v_and_b32 v6, 15, v0
    s_movk_i32 s25, {RS}
    v_mul_lo_u32 v10, v3, s25
    v_lshl_add_u32 v10, v6, 4, v10
    v_lshlrev_b32 v3, 11, v3
    v_lshl_add_u32 v3, v6, 4, v3
    s_lshl_b32 s31, s21, 11
    s_lshl_b32 s25, s22, 2
    s_add_u32 s31, s31, s25
    s_add_u32 s31, s31, {WS_G}
    s_waitcnt lgkmcnt(0)
    s_barrier
    """)
    for p in range(4): k(f"ds_read_b128 {vr(ACC+4*p,4)}, v10 offset:{p*16*RS}")
    for p in range(4):
        k(f"s_waitcnt lgkmcnt({3-p})\nbuffer_store_dwordx4 {vr(ACC+4*p,4)}, v3, s[16:19], s31 offen")
        if p < 3: k("s_add_u32 s31, s31, 32768")
    stamp_out(k, 12, "s[16:19]", 4)
    k(f"""
    s_cmp_lg_u32 s45, 0
    s_cbranch_scc1 L_{L}_end
    v_lshlrev_b32 v3, 4, v7
    s_lshl_b32 s25, s24, 5
    s_add_u32 s25, s25, s22
    s_lshl_b32 s25, s25, 2
    s_add_u32 s25, s25, {WS_CSQ}
    """)
    for g in range(4): k(f"buffer_store_dwordx4 {vr(ACC1+4*g,4)}, v3, s[16:19], s25 offen offset:{32*g}")
    k(f"s_branch L_{L}_end")
    k.label(f"L_{L}_kv")
    srd(k, 40, 32, 16384); srd(k, 44, 34, 16384)
    XB = 32768; VO = 16384 + 128
    vDX, vDW, vXb, vWb = 1, 2, 16, 32
    k(f"""
    s_lshl_b32 s21, s2, 5
    s_add_u32 s2, s2, 256
    v_lshlrev_b32 v{vDW}, 4, v4
    s_lshl_b32 s25, s20, 3
    s_add_u32 s26, s25, s21
    s_lshl_b32 s26, s26, 10
    s_lshl_b32 s28, s20, 13
    s_lshl_b32 s29, s20, 12
    s_and_b32 s25, s25, 8             ; (8w)&15
    """)
    for j in range(8):
        k(f"""
        s_add_u32 s38, s25, {j}
        s_lshl_b32 s38, s38, 4
        v_xor_b32 v{vDX}, s38, v{vDW}
        s_add_u32 s38, s28, {j*1024}
        s_mov_b32 m0, s38
        s_add_u32 s39, s26, {j*1024}
        buffer_load_dwordx4 v{vDX}, s[8:11], s39 offen lds
        """)
    for j in range(4):
        k(f"""
        s_add_u32 s39, s29, {j*1024}
        s_add_u32 s38, s39, {XB}
        s_mov_b32 m0, s38
        s_nop 0
        buffer_load_dwordx4 v{vDW}, s[40:43], s39 offen lds
        s_add_u32 s38, s39, {XB+VO}
        s_mov_b32 m0, s38
        s_nop 0
        buffer_load_dwordx4 v{vDW}, s[44:47], s39 offen lds
        """)
    k(f"""
    v_and_b32 v10, 15, v5
    v_xor_b32 v10, v10, v7
    v_lshlrev_b32 v10, 4, v10
    v_lshl_add_u32 v10, v5, 10, v10
    s_lshl_b32 s25, s20, 8
    """)
    for ks in range(8): k(f"v_xor_b32 v{vXb+ks}, {32*ks}, v10\nv_add_u32 v{vXb+ks}, s25, v{vXb+ks}")
    k(f"""
    v_bfe_u32 v10, v0, 2, 2
    v_lshl_add_u32 v11, v7, 3, v10
    v_lshlrev_b32 v11, 5, v11         ; row*32
    v_and_b32 v12, 3, v0
    v_lshl_add_u32 v11, v12, 3, v11   ; + (i&3)*8
    v_bfe_u32 v12, v0, 4, 1
    s_movk_i32 s31, {VO}
    v_mad_u32_u24 v{vWb}, v12, s31, v11
    s_add_u32 s25, s29, {XB}
    v_add_u32 v{vWb}, s25, v{vWb}
    s_waitcnt vmcnt(0)
    s_barrier
    """)
    FR = c.FR
    def rd(ks):
        b = FR[ks % 2]
        k(f"ds_read_b128 {vr(b,4)}, v{vXb+ks}")
        k(f"ds_read_b64_tr_b16 {vr(b+4,2)}, v{vWb} offset:{ks*512}")
        k(f"ds_read_b64_tr_b16 {vr(b+6,2)}, v{vWb} offset:{ks*512+128}")
    rd(0)
    for ks in range(8):
        if ks < 7: rd(ks+1); k("s_waitcnt lgkmcnt(3)")
        else: k("s_waitcnt lgkmcnt(0)")
        b = FR[ks % 2]
        k(f"v_mfma_f32_32x32x16_bf16 {vr(ACC,16)}, {vr(b+4,4)}, {vr(b,4)}, {vr(ACC,16)}")
        hook(b)
    k(f"""
    s_nop 15
    s_barrier
    s_mul_i32 s25, s20, 10240
    v_add_u32 v10, s25, v{vDW}
    s_cmp_eq_u32 s20, 0
    s_cbranch_scc1 L_{L}_kvr
    """)
    blocks = [ACC + 4*i for i in range(4)] + [ACC1 + 4*i for i in range(4)] + [vS, vS + 4]
    for i, b in enumerate(blocks): k(f"ds_write_b128 v10, {vr(b,4)} offset:{i*1024}")
    k(f"s_waitcnt lgkmcnt(0)\ns_barrier\ns_branch L_{L}_end")
    k.label(f"L_{L}_kvr")
    k("s_barrier")
    T = 16
    for w in range(1, 4):
        for i, b in enumerate(blocks): k(f"ds_read_b128 {vr(T+4*i,4)}, v10 offset:{w*10240 + i*1024}")
        k("s_waitcnt lgkmcnt(0)")
        for i, b in enumerate(blocks):
            for r in range(4): k(f"v_add_f32 v{b+r}, v{b+r}, v{T+4*i+r}")
    ln_stats(1.0)
    vSq = vS
    k(f"""
    v_lshlrev_b32 v10, 3, v5
    s_lshl_b32 s38, s21, 3
    s_add_u32 s38, s38, {WS_XST}
    buffer_store_dwordx2 v[12:13], v10, s[16:19], s38 offen
    """)
    k(f"""
    s_mov_b32 s25, s21
    v_lshlrev_b32 v10, 4, v5
    v_lshl_add_u32 v10, v7, 3, v10
    s_lshl_b32 s38, s25, 5            ; tile*1024
    s_add_u32 s39, s38, {WS_K}
    buffer_store_dwordx2 {vr(ACC,2)}, v10, s[16:19], s39 offen
    buffer_store_dwordx2 {vr(ACC+2,2)}, v10, s[16:19], s39 offen offset:512
    v_mov_b32 v{vSq}, 0
    """)
    for r in range(4): k(f"v_dot2_f32_bf16 v{vSq}, v{ACC+r}, v{ACC+r}, v{vSq}")
    k(f"""
    v_and_b32 v11, 19, v5             ; 16i + (kk&3)
    v_bfe_u32 v12, v5, 2, 1
    v_lshl_add_u32 v11, v12, 3, v11
    v_bfe_u32 v12, v5, 3, 1
    v_lshl_add_u32 v11, v12, 2, v11   ; pos
    v_lshlrev_b32 v11, 1, v11
    v_lshl_add_u32 v11, v7, 14, v11   ; + 4h*4096
    s_lshl_b32 s38, s25, 1
    s_add_u32 s39, s38, {WS_VT}
    v_mov_b32 v31, v{vSq}
    """)
    for r in range(4):
        d0 = (r & 1) * 2 + (r >> 1) * 8
        k(f"s_add_u32 s38, s39, {d0*4096}")
        k(f"buffer_store_short v{ACC+4+r}, v11, s[16:19], s38 offen")
        k(f"s_add_u32 s38, s39, {(d0+1)*4096}")
        k(f"buffer_store_short_d16_hi v{ACC+4+r}, v11, s[16:19], s38 offen")
    k(f"""
    v_permlane32_swap_b32 v{vSq}, v31
    s_nop 1
    v_add_f32 v{vSq}, v{vSq}, v31
    s_nop 1
    v_max_f32_dpp v{vSq}, v{vSq}, v{vSq} quad_perm:[1,0,3,2] row_mask:0xf bank_mask:0xf
    s_nop 1
    v_max_f32_dpp v{vSq}, v{vSq}, v{vSq} quad_perm:[2,3,0,1] row_mask:0xf bank_mask:0xf
    s_nop 1
    v_max_f32_dpp v{vSq}, v{vSq}, v{vSq} row_ror:4 row_mask:0xf bank_mask:0xf
    s_nop 1
    v_max_f32_dpp v{vSq}, v{vSq}, v{vSq} row_ror:8 row_mask:0xf bank_mask:0xf
    s_nop 1
    v_mov_b32 v31, v{vSq}
    s_nop 1
    v_permlane16_swap_b32 v{vSq}, v31
    s_nop 1
    v_max_f32 v{vSq}, v{vSq}, v31
    s_lshr_b32 s38, s25, 3            ; tile*4
    s_add_u32 s38, s38, {WS_KN}
    v_mov_b32 v10, 0
    buffer_store_dword v{vSq}, v10, s[16:19], s38 offen
    """)
    stamp_out(k, 1, "s[16:19]", 4)
    k(f"""
    s_cmp_lg_u32 s25, 0
    s_cbranch_scc1 L_{L}_end
    v_mov_b32 v16, 0
    v_mov_b32 v17, 0
    v_mov_b32 v18, 0
    v_mov_b32 v19, 0
    s_mov_b32 s38, {WS_CS}
    """)
    for i in range(14):
        k(f"buffer_store_dwordx4 v[16:19], v{vDW}, s[16:19], s38 offen\ns_add_u32 s38, s38, 1024")
    k.label(f"L_{L}_end")
    k("s_endpgm")
    return k

def gen_ffn(KC=64, R=3):
    name = "ffn_kernel"; L = name
    c = G()
    c.WM, c.WN, c.MT, c.NT, c.NMAT, c.BN = 2, 4, 2, 1, 2, 128
    c.K, c.KC, c.R, c.ldx, c.xbase, c.xsrd, c.ldw, c.wsrd = 512, KC, R, 1024, WS_H, "s[16:19]", 3584, ["s[8:11]", "s[12:15]"]
    c.vDX, c.vDW = 1, 2
    c.vXb, c.vXa, c.vWb, c.vWa = 16, 24, 32, 33
    c.FR = [36, 52]
    c.ACC = 68 + 0
    c.ACC = 72
    c.NPRE = 1
    c.STAG = True
    SB = 128 * KC * 2 + 2 * KC * 256
    k = Kern(name, (224, 1, 1), (512, 1, 1), SB * R + 9216, 192)
    ST = 136
    CS = 152
    k(f"s_cmp_ge_u32 s2, 224\ns_cbranch_scc1 L_{L}_end")
    k("s_load_dwordx4 s[4:7], s[0:1], 48\ns_load_dwordx2 s[36:37], s[0:1], 88")
    stamp(k, 0)
    lane_consts(k)
    k("s_waitcnt lgkmcnt(0)")
    srd(k, 8, 4, 1835008); srd(k, 12, 6, 1835008); srd(k, 16, 36, WS_SIZE)
    if FFNMAP == 0:
        k("s_and_b32 s21, s2, 7\ns_mul_i32 s21, s21, 28\ns_lshr_b32 s22, s2, 3\ns_add_u32 s21, s21, s22\ns_lshr_b32 s22, s21, 4\ns_and_b32 s21, s21, 15\ns_lshl_b32 s21, s21, 7\ns_lshl_b32 s22, s22, 7")
    else:
        k("s_and_b32 s21, s2, 7\ns_lshl_b32 s21, s21, 1\ns_lshr_b32 s22, s2, 3\ns_cmp_ge_u32 s22, 14\ns_cselect_b32 s25, 14, 0\ns_addc_u32 s21, s21, 0\ns_sub_u32 s22, s22, s25\ns_lshl_b32 s21, s21, 7\ns_lshl_b32 s22, s22, 7")
    AUX = SB * R
    PRM = 184
    k(f"""
    s_lshr_b32 s33, s20, 2
    v_lshlrev_b32 v3, 4, v4
    s_lshl_b32 s25, s20, 10
    s_add_u32 s38, s25, {AUX}
    s_mov_b32 m0, s38
    s_lshl_b32 s25, s20, 14
    s_lshl_b32 s39, s21, 3
    s_add_u32 s39, s39, s25
    s_add_u32 s39, s39, {WS_ST}
    buffer_load_dwordx4 v3, s[16:19], s39 offen lds
    v_lshlrev_b32 v3, 4, v5
    s_movk_i32 s25, 7168
    v_mad_u32_u24 v3, v7, s25, v3
    s_mov_b32 m0, {AUX + 8192}
    s_lshl_b32 s39, s22, 2
    s_add_u32 s39, s39, {WS_CS}
    buffer_load_dwordx4 v3, s[16:19], s39 offen lds
    """)
    gemm_setup(k, c)
    GA = -2.0 * 0.7978845608028654 * 1.4426950408889634
    k(f"""
    s_lshl_b32 s25, s23, 9            ; wm*64*8
    v_lshlrev_b32 v3, 3, v5
    v_lshl_add_u32 v3, v7, 12, v3     ; m*8 + 4h*1024
    v_add_u32 v3, s25, v3
    v_add_u32 v3, {AUX}, v3
    s_lshl_b32 s25, s24, 7            ; wn*32*4
    v_lshlrev_b32 v6, 4, v7
    v_add_u32 v6, s25, v6
    v_add_u32 v6, {AUX + 8192}, v6
    s_waitcnt vmcnt({c.NPRE * c.DPS})
    s_barrier
    """)
    for mt in range(2):
        for j in range(4): k(f"ds_read_b64 {vr(ST+8*mt+2*j,2)}, v3 offset:{j*1024 + mt*256}")
    for mat in range(2):
        for g in range(4): k(f"ds_read_b128 {vr(CS+16*mat+4*g,4)}, v6 offset:{mat*512 + 32*g}")
    k("s_waitcnt lgkmcnt(8)")
    for mt in range(2):
        b = ST + 8 * mt
        for j in range(1, 4): k(f"v_add_f32 v{b}, v{b}, v{b+2*j}\nv_add_f32 v{b+1}, v{b+1}, v{b+2*j+1}")
    half_sum(k, [ST, ST+1, ST+8, ST+9], [10, 11, 12, 13])
    k("s_waitcnt lgkmcnt(0)")
    for mt in range(2):
        b = ST + 8 * mt; P = PRM + 4 * mt
        k(f"""
        v_mul_f32 v12, {fhex(-1.0/512)}, v{b}
        v_mul_f32 v13, {fhex(1.0/512)}, v{b+1}
        v_fma_f32 v13, -v12, v12, v13
        v_max_f32 v13, 0, v13
        v_add_f32 v{P+2}, {fhex(1e-5)}, v13
        v_rsq_f32 v13, v{P+2}
        s_nop 0
        v_mul_f32 v{P}, {fhex(GA)}, v13
        v_mul_f32 v{P+1}, v13, v13
        v_mul_f32 v{P+1}, v{P+1}, v{P}
        v_mul_f32 v{P+1}, {fhex(0.044715)}, v{P+1}
        """)
        for r in range(16):
            k(f"v_mul_f32 v{c.ACC+16*mt+r}, v12, v{CS+r}\nv_mul_f32 v{c.ACC+32+16*mt+r}, v12, v{CS+16+r}")
    gemm_main(k, c)
    RS = 272
    assert c.NST % R == 2 and R == 3
    TB = 2 * SB
    k(f"""
    s_lshl_b32 s25, s23, 6
    v_add_u32 v10, s25, v5
    s_movk_i32 s25, {RS}
    v_mul_lo_u32 v10, v10, s25
    v_lshl_add_u32 v10, v7, 3, v10
    s_lshl_b32 s25, s24, 6
    s_add_u32 s25, s25, {TB}
    v_add_u32 v10, s25, v10
    """)
    for mt in range(2):
        P = PRM + 4 * mt
        g0 = c.ACC + 16 * mt; u0 = c.ACC + 32 + 16 * mt
        T = c.FR[0]
        for r0 in range(0, 16, 8):
            rr = range(r0, r0 + 8)
            for r in rr: k(f"v_mul_f32 v{T+r-r0}, v{g0+r}, v{g0+r}")
            for r in rr: k(f"v_mul_f32 v{u0+r}, v{u0+r}, v{g0+r}")
            for r in rr: k(f"v_fma_f32 v{T+r-r0}, v{T+r-r0}, v{P+1}, v{P}")
            for r in rr: k(f"v_mul_f32 v{T+r-r0}, v{T+r-r0}, v{g0+r}")
            for r in rr: k(f"v_exp_f32 v{T+r-r0}, v{T+r-r0}")
            for r in rr: k(f"v_fma_f32 v{T+r-r0}, v{T+r-r0}, v{P+2}, v{P+2}")
            for r in rr: k(f"v_rcp_f32 v{T+r-r0}, v{T+r-r0}")
            for r in rr: k(f"v_mul_f32 v{u0+r}, v{u0+r}, v{T+r-r0}")
        for r in range(8): k(f"v_cvt_pk_bf16_f32 v{u0+r}, v{u0+2*r}, v{u0+2*r+1}")
        for g in range(4): k(f"ds_write_b64 v10, {vr(u0+2*g,2)} offset:{mt*32*RS + 16*g}")
    k(f"""
    v_lshrrev_b32 v3, 4, v0
    v_and_b32 v6, 15, v0
    s_movk_i32 s25, {RS}
    v_mul_lo_u32 v10, v3, s25
    v_lshl_add_u32 v10, v6, 4, v10
    v_add_u32 v10, {TB}, v10
    s_movk_i32 s25, 3584
    v_mul_lo_u32 v3, v3, s25
    v_lshl_add_u32 v3, v6, 4, v3
    s_mul_i32 s31, s21, 3584
    s_lshl_b32 s25, s22, 1
    s_add_u32 s31, s31, s25
    s_add_u32 s31, s31, {WS_ACT}
    s_waitcnt lgkmcnt(0)
    s_barrier
    """)
    for p in range(4): k(f"ds_read_b128 {vr(c.ACC+4*p,4)}, v10 offset:{p*32*RS}")
    for p in range(4):
        k(f"s_waitcnt lgkmcnt({3-p})\nbuffer_store_dwordx4 {vr(c.ACC+4*p,4)}, v3, s[16:19], s31 offen")
        if p < 3: k(f"s_add_u32 s31, s31, {32*3584}")
    stamp_out(k, 12, "s[16:19]", 8)
    k.label(f"L_{L}_end")
    k("s_endpgm")
    return k

def emit(kerns, path):
    hdr = open(f"cdna_kernels/{NAME}.s.ref").read().split("; Override launch")[0]
    s = hdr
    for k in kerns:
        s += f"; @launch kernel={k.name} grid=({k.grid[0]},{k.grid[1]},{k.grid[2]}) block=({k.block[0]},{k.block[1]},{k.block[2]}) lds={k.lds}\n"
    s += '.amdgcn_target "amdgcn-amd-amdhsa--gfx950"\n.text\n'
    for k in kerns: s += k.text()
    s += '.section .rodata,"a"\n'
    for k in kerns: s += k.desc()
    open(path, "w").write(s)

if __name__ == "__main__":
    if len(sys.argv) > 1 and sys.argv[1] == "stamp":
        STAMP = True
        emit([gen_qkv(), gen_attn(), gen_res("k3"), gen_ffn(), gen_res("k5")], "full_stamp.s")
        sys.exit(0)
    emit([gen_qkv(), gen_attn(), gen_res("k3"), gen_ffn(), gen_res("k5")], "full.s")
```

```python
import sys
NAME = "sequential_preLN__grouped_kv_mqa__glu_gated_geglu__prompt"
WS_Q, WS_K, WS_VT, WS_KN, WS_CS, WS_ST, WS_O, WS_H, WS_ACT = 0, 0x200000, 0x210000, 0x220000, 0x221000, 0x230000, 0x300000, 0x500000, 0x800000
WS_SIZE = 268435456
WS_G, WS_CSQ, WS_XST = 0x1400000, 0x226000, 0x228000

class Kern:
    def __init__(self, name, grid, block, lds, nvgpr, nsgpr=100):
        self.name, self.grid, self.block, self.lds, self.nvgpr, self.nsgpr = name, grid, block, lds, nvgpr, nsgpr
        self.L = []
    def __call__(self, s):
        for line in s.split("\n"):
            line = line.strip()
            if line: self.L.append("    " + line)
    def label(self, s): self.L.append(s + ":")
    def text(self):
        return f".globl {self.name}\n.p2align 8\n.type {self.name},@function\n{self.name}:\n" + "\n".join(self.L) + "\n"
    def desc(self):
        nv = (self.nvgpr + 3) // 4 * 4
        return f""".p2align 6
.amdhsa_kernel {self.name}
  .amdhsa_next_free_vgpr {nv}
  .amdhsa_next_free_sgpr {self.nsgpr}
  .amdhsa_accum_offset {nv}
  .amdhsa_group_segment_fixed_size 0
  .amdhsa_kernarg_size 96
  .amdhsa_user_sgpr_count 2
  .amdhsa_user_sgpr_kernarg_segment_ptr 1
  .amdhsa_system_sgpr_workgroup_id_x 1
.end_amdhsa_kernel
"""
STAMP = False
AV = int(__import__('os').environ.get('AV', '1'))
FFNMAP = int(__import__('os').environ.get('FFNMAP', '0'))
SB0 = 70
def stamp(k, i):
    if STAMP: k(f"s_memtime s[{SB0+2*i}:{SB0+1+2*i}]")
def stamp_out(k, n, wsrd, nwaves, base=0x1000000):
    if not STAMP: return
    k("s_waitcnt vmcnt(0) lgkmcnt(0)")
    k(f"s_memtime s[{SB0+2*n}:{SB0+1+2*n}]\ns_waitcnt lgkmcnt(0)")
    k(f"s_mul_i32 s58, s2, {nwaves}\ns_add_u32 s58, s58, s20\ns_lshl_b32 s58, s58, 6\ns_add_u32 s58, s58, {base}\nv_mov_b32 v1, 0")
    for i in range(1, n+1):
        k(f"s_sub_u32 s59, s{SB0+2*i}, s{SB0}\nv_mov_b32 v2, s59\nbuffer_store_dword v2, v1, {wsrd}, s58 offen offset:{4*(i-1)}")
def vr(b, n): return f"v[{b}:{b+n-1}]"

def srd(k, d, ptr_s, size):
    k(f"s_mov_b32 s{d}, s{ptr_s}\ns_mov_b32 s{d+1}, s{ptr_s+1}\ns_mov_b32 s{d+2}, {size}\ns_mov_b32 s{d+3}, 0x00020000")

def gen_attn():
    VBASE = 65536; VRS = 4112; CBASE = VBASE + 18 * VRS
    CBASE = (CBASE + 15) // 16 * 16
    FLAG = CBASE + 4 * 4608
    LDS = FLAG + 64
    k = Kern("attn_kernel", (256, 1, 1), (512, 1, 1), LDS, 180)
    QA, QB = 8, 12; KF = [16, 20]; VF = [24, 32]; PA, PB = 40, 48
    CA, CB = 64, 80; SA, SB = 96, 112; OA, OB = 128, 144
    vL16, vK, vV = 1, 2, 3
    k(f"""
    s_cmp_ge_u32 s2, 256
    s_cbranch_scc1 L_attn_end
    s_load_dwordx2 s[4:5], s[0:1], 88
    s_load_dwordx4 s[32:35], s[0:1], 48
    s_load_dwordx2 s[60:61], s[0:1], 32
    s_load_dwordx2 s[62:63], s[0:1], 64
    """)
    stamp(k, 0)
    k(f"""
    v_and_b32 v4, 63, v0
    v_lshrrev_b32 v5, 6, v0
    v_lshlrev_b32 v{vL16}, 4, v4
    v_readfirstlane_b32 s20, v5
    v_and_b32 v6, 31, v0
    v_lshlrev_b32 v6, 5, v6
    v_bfe_u32 v7, v0, 5, 1
    v_lshl_or_b32 v6, v7, 4, v6       ; (l&31)*32 + h*16
    v_lshlrev_b32 v57, 2, v4
    s_waitcnt lgkmcnt(0)
    """)
    srd(k, 8, 4, WS_SIZE)
    k(f"""
    s_and_b32 s21, s20, 3
    s_lshr_b32 s22, s20, 2
    s_lshl_b32 s24, s2, 13
    s_lshl_b32 s23, s21, 11
    s_add_u32 s24, s24, s23
    s_mov_b32 s53, 0                  ; pass
    s_mov_b32 s52, 0
    s_mul_i32 s26, s21, 4608
    s_add_u32 s26, s26, {CBASE}
    v_add_u32 v59, s26, v{vL16}
    s_lshl_b32 s25, s21, 12           ; rb*4096
    s_mul_i32 s28, s21, {4*VRS}
    s_lshl_b32 s29, s21, 14
    s_cmp_eq_u32 s22, 0
    s_cbranch_scc1 L_attn_roleD
    s_mov_b32 s25, {WS_KN}
    s_lshl_b32 s26, s24, 1
    s_add_u32 s26, s26, {WS_G}
    s_mov_b32 s27, {WS_CSQ}
    v_lshlrev_b32 v58, 1, v6          ; (l&31)*64 + h*32
    s_lshr_b32 s28, s24, 7
    s_add_u32 s28, s28, {WS_XST}
    s_add_u32 s4, s4, s28
    s_addc_u32 s5, s5, 0
    s_load_dwordx4 s[64:67], s[4:5], 0
    buffer_load_dwordx4 {vr(SA,4)}, v58, s[8:11], s26 offen
    buffer_load_dwordx4 {vr(SA+4,4)}, v58, s[8:11], s26 offen offset:16
    buffer_load_dwordx4 {vr(SA+8,4)}, v58, s[8:11], s26 offen offset:2048
    buffer_load_dwordx4 {vr(SA+12,4)}, v58, s[8:11], s26 offen offset:2064
    buffer_load_dwordx4 {vr(SB,4)}, v58, s[8:11], s27 offen
    buffer_load_dwordx4 {vr(SB+4,4)}, v58, s[8:11], s27 offen offset:16
    buffer_load_dword v56, v57, s[8:11], s25 offen
    v_and_b32 v5, 255, v0
    v_lshlrev_b32 v5, 4, v5
    v_mov_b32 v60, 0x3f803f80
    v_mov_b32 v61, 0x3f803f80
    v_mov_b32 v62, 0x3f803f80
    v_mov_b32 v63, 0x3f803f80
    v_add_u32 v5, {VBASE + 16*VRS}, v5
    ds_write_b128 v5, v[60:63]
    v_mov_b32 v{PA}, 0
    v_mov_b32 v{PA+1}, 0
    v_mov_b32 v{PA+2}, 0
    v_mov_b32 v{PA+3}, 0
    ds_write_b128 v5, {vr(PA,4)} offset:{VRS}
    v_mov_b32 v5, {FLAG}
    ds_write_b32 v5, v{PA}
    s_waitcnt vmcnt(0) lgkmcnt(0)
    v_mov_b32 v58, {fhex(QSCALE)}
    v_mul_f32 v60, s67, v58
    v_mul_f32 v58, s65, v58
    """)
    for i in range(8):
        k(f"v_fma_f32 v{SA+i}, s64, v{SB+i}, v{SA+i}\nv_fma_f32 v{SA+8+i}, s66, v{SB+i}, v{SA+8+i}")
    for i in range(8):
        k(f"v_mul_f32 v{SA+i}, v{SA+i}, v58\nv_mul_f32 v{SA+8+i}, v{SA+8+i}, v60")
    for i in range(4):
        k(f"v_cvt_pk_bf16_f32 v{QA+i}, v{SA+2*i}, v{SA+2*i+1}\nv_cvt_pk_bf16_f32 v{QB+i}, v{SA+8+2*i}, v{SA+8+2*i+1}")
    k(f"""
    v_max_f32_dpp v56, v56, v56 quad_perm:[1,0,3,2] row_mask:0xf bank_mask:0xf
    v_mov_b32 v4, 0
    v_mov_b32 v5, 0
    v_max_f32_dpp v56, v56, v56 quad_perm:[2,3,0,1] row_mask:0xf bank_mask:0xf
    ds_write_b128 v59, {vr(QA,4)}
    ds_write_b128 v59, {vr(QB,4)} offset:1024
    v_dot2_f32_bf16 v4, v{QA}, v{QA}, v4
    v_dot2_f32_bf16 v5, v{QB}, v{QB}, v5
    v_max_f32_dpp v56, v56, v56 row_ror:4 row_mask:0xf bank_mask:0xf
    v_dot2_f32_bf16 v4, v{QA+1}, v{QA+1}, v4
    v_dot2_f32_bf16 v5, v{QB+1}, v{QB+1}, v5
    v_max_f32_dpp v56, v56, v56 row_ror:8 row_mask:0xf bank_mask:0xf
    v_dot2_f32_bf16 v4, v{QA+2}, v{QA+2}, v4
    v_dot2_f32_bf16 v5, v{QB+2}, v{QB+2}, v5
    v_mov_b32 v57, v56
    v_dot2_f32_bf16 v4, v{QA+3}, v{QA+3}, v4
    v_dot2_f32_bf16 v5, v{QB+3}, v{QB+3}, v5
    s_nop 1
    v_permlane16_swap_b32 v56, v57
    s_nop 1
    v_max_f32 v56, v56, v57
    v_mov_b32 v58, v4
    v_mov_b32 v57, v56
    v_mov_b32 v60, v5
    s_nop 1
    v_permlane32_swap_b32 v56, v57
    v_permlane32_swap_b32 v4, v58
    v_permlane32_swap_b32 v5, v60
    s_nop 1
    v_max_f32 v56, v56, v57
    v_add_f32 v4, v4, v58
    v_add_f32 v5, v5, v60
    v_mul_f32 v4, v4, v56
    v_mul_f32 v5, v5, v56
    v_sqrt_f32 v4, v4
    v_sqrt_f32 v5, v5
    s_nop 0
    ds_write_b64 v59, v[4:5] offset:2048
    s_waitcnt lgkmcnt(0)
    s_barrier
    """)
    stamp(k, 1)
    k("s_branch L_attn_pass")
    k.label("L_attn_roleD")
    XF = 160
    def kvdma(ph):
        for hh in range(2):
            for j in range(4):
                k(f"""
                s_add_u32 s26, s25, {hh*32768 + ph*16384 + j*1024}
                s_mov_b32 m0, s26
                s_add_u32 s27, s26, {WS_K}
                buffer_load_dwordx4 v{vL16}, s[8:11], s27 offen lds
                """)
        for d in range(4):
            for c in (ph, 2 + ph):
                k(f"""
                s_add_u32 s26, s28, {VBASE + d*VRS + c*1024}
                s_mov_b32 m0, s26
                s_add_u32 s27, s29, {WS_VT + d*4096 + c*1024}
                buffer_load_dwordx4 v{vL16}, s[8:11], s27 offen lds
                """)
    kvdma(0)
    k("s_waitcnt vmcnt(0)\ns_barrier")
    stamp(k, 1)
    k(f"""
    ds_read_b128 {vr(QA,4)}, v59
    ds_read_b128 {vr(QB,4)}, v59 offset:1024
    ds_read_b64 v[4:5], v59 offset:2048
    """)
    kvdma(1)
    k("s_waitcnt lgkmcnt(0)")
    srd(k, 40, 60, 524288); srd(k, 44, 62, 1835008)
    k(f"""
    s_lshl_b32 s38, s2, 2
    s_add_u32 s38, s38, s21           ; W
    s_lshl_b32 s39, s38, 9
    s_mul_i32 s50, s38, 1792
    buffer_load_dwordx4 v[176:179], v{vL16}, s[40:43], s39 offen
    buffer_load_dwordx4 v[176:179], v{vL16}, s[44:47], s50 offen
    buffer_load_dwordx4 v[176:179], v{vL16}, s[44:47], s50 offen offset:1024
    """)
    srd(k, 40, 32, 1835008); srd(k, 44, 34, 1835008)
    k(f"""
    s_cmp_ge_u32 s38, 896
    s_cbranch_scc1 L_attn_pass
    s_mov_b32 s52, 1
    s_cmp_ge_u32 s38, 448
    s_cselect_b32 s39, 448, 0
    s_cselect_b32 s48, 1792, 0
    s_cselect_b32 s40, s44, s40
    s_cselect_b32 s41, s45, s41
    s_sub_u32 s38, s38, s39           ; rem
    s_mul_i32 s39, s38, 9363
    s_lshr_b32 s39, s39, 16           ; rc
    s_mul_i32 s49, s39, 7
    s_sub_u32 s49, s38, s49           ; cb
    s_mul_i32 s50, s39, {8*3584}
    s_lshl_b32 s51, s49, 9
    s_add_u32 s50, s50, s51
    v_lshrrev_b32 v58, 1, v{vL16}
    """)
    for r in range(8):
        k(f"buffer_load_dwordx2 {vr(XF+2*r,2)}, v58, s[40:43], s50 offen")
        if r < 7: k(f"s_add_u32 s50, s50, 3584")
    k.label("L_attn_pass")
    if AV in (1, 4, 5): k("s_cmp_eq_u32 s22, 0\ns_cbranch_scc1 L_attn_np\ns_setprio 1"); k.label("L_attn_np")
    k(f"""
    s_lshl_b32 s26, s22, 15
    v_add_u32 v{vK}, s26, v{vL16}
    v_and_b32 v58, 31, v0
    v_min_u32 v58, 17, v58
    s_movk_i32 s27, {VRS}
    v_mul_lo_u32 v58, v58, s27
    v_lshl_add_u32 v58, v7, 4, v58
    s_lshl_b32 s26, s22, 11
    s_add_u32 s26, s26, {VBASE}
    v_add_u32 v{vV}, s26, v58
    ds_read_b128 {vr(KF[0],4)}, v{vK}
    ds_read_b128 {vr(KF[1],4)}, v{vK} offset:1024
    ds_read_b128 {vr(VF[0],4)}, v{vV}
    ds_read_b128 {vr(VF[0]+4,4)}, v{vV} offset:32
    """)
    for i in range(16): k(f"v_sub_f32 v{CA+i}, 0, v4\nv_sub_f32 v{CB+i}, 0, v5")
    for i in range(16): k(f"v_mov_b32 v{OA+i}, 0\nv_mov_b32 v{OB+i}, 0")
    for i in range(4): k(f"v_mov_b32 v{PB+4+i}, 0\nv_mov_b32 v{VF[1]+4+i}, 0")
    k(f"""
    s_waitcnt lgkmcnt(3)
    v_mfma_f32_32x32x16_bf16 {vr(SA,16)}, {vr(KF[0],4)}, {vr(QA,4)}, {vr(CA,16)}
    s_mov_b32 s30, 16
    s_nop 9
    """)
    def MF(D, A, B, C): k(f"v_mfma_f32_32x32x16_bf16 {vr(D,16)}, {vr(A,4)}, {vr(B,4)}, {vr(C,16)}")
    def unit(S, P, O, vf, prevPV2, nextQK, rdV=None, rdK=None):
        def E(a, b):
            for i in range(a, b): k(f"v_exp_f32 v{S+i}, v{S+i}")
        def C(a, b):
            for i in range(a, b): k(f"v_cvt_pk_bf16_f32 v{P+i}, v{S+2*i}, v{S+2*i+1}")
        if AV in (0, 1, 4, 5, 6, 7):
            E(0, 4); MF(*prevPV2)
            if rdV and AV != 4: k(rdV)
            E(4, 8); C(0, 4); MF(*nextQK)
            if rdK and AV != 4: k(rdK)
            E(8, 12); MF(O, vf, P, O); E(12, 16); C(4, 8)
        elif AV == 2:
            E(0, 5); MF(*prevPV2)
            if rdV: k(rdV)
            E(5, 8); C(0, 2); E(8, 10); MF(*nextQK)
            if rdK: k(rdK)
            C(2, 4); E(10, 14); C(4, 5); MF(O, vf, P, O); E(14, 16); C(5, 8)
        elif AV == 3:
            E(0, 2); C(0, 1); E(2, 4); C(1, 2); MF(*prevPV2)
            if rdV: k(rdV)
            E(4, 6); C(2, 3); E(6, 8); C(3, 4); MF(*nextQK)
            if rdK: k(rdK)
            E(8, 10); C(4, 5); E(10, 12); MF(O, vf, P, O); C(5, 6); E(12, 14); C(6, 7); E(14, 16); k("s_nop 0"); C(7, 8)
    k.label("L_attn_loop")
    k("s_cmp_lg_u32 s30, 9\ns_cbranch_scc1 L_attn_nb\ns_waitcnt vmcnt(0)\ns_barrier")
    k(f"""
    s_cmp_lg_u32 s52, 1
    s_cbranch_scc1 L_attn_nb
    s_mov_b32 s52, 0
    v_mov_b32 v58, 0x00003f80
    v_mov_b32 v59, 0x3f800000
    v_mov_b32 v60, 0
    v_mov_b32 v61, 0
    v_mov_b32 v62, 0
    v_mov_b32 v63, 0
    """)
    for r in range(8):
        k(f"""
        v_dot2_f32_bf16 v60, v{XF+2*r}, v58, v60
        v_dot2_f32_bf16 v61, v{XF+2*r}, v59, v61
        v_dot2_f32_bf16 v62, v{XF+2*r+1}, v58, v62
        v_dot2_f32_bf16 v63, v{XF+2*r+1}, v59, v63
        """)
    k(f"""
    s_lshl_b32 s51, s49, 8
    s_add_u32 s51, s51, s48
    s_lshl_b32 s51, s51, 2
    s_add_u32 s51, s51, {WS_CS}
    s_nop 2
    buffer_atomic_add_f32 v60, v{vL16}, s[8:11], s51 offen
    buffer_atomic_add_f32 v61, v{vL16}, s[8:11], s51 offen offset:4
    buffer_atomic_add_f32 v62, v{vL16}, s[8:11], s51 offen offset:8
    buffer_atomic_add_f32 v63, v{vL16}, s[8:11], s51 offen offset:12
    """)
    k.label("L_attn_nb")
    for par in range(2):
        if AV == 6:
            k(f"s_setprio {par}")
        if AV == 7:
            k(f"s_add_u32 s31, s22, {par}\ns_bitcmp1_b32 s31, 0\ns_cbranch_scc1 L_attn_p{par}\ns_setprio 0\ns_branch L_attn_q{par}")
            k.label(f"L_attn_p{par}"); k("s_setprio 1"); k.label(f"L_attn_q{par}")
        k("s_waitcnt lgkmcnt(0)")
        unit(SA, PA, OA, VF[par], (OB, VF[1-par]+4, PB+4, OB), (SB, KF[par], QB, CB),
             rdV=f"ds_read_b128 {vr(VF[1-par],4)}, v{vV} offset:{(1+par)*64}\nds_read_b128 {vr(VF[1-par]+4,4)}, v{vV} offset:{(1+par)*64+32}",
             rdK=f"ds_read_b128 {vr(KF[par],4)}, v{vK} offset:{(2+par)*1024}")
        unit(SB, PB, OB, VF[par], (OA, VF[par]+4, PA+4, OA), (SA, KF[1-par], QA, CA))
    k(f"""
    v_add_u32 v{vK}, 2048, v{vK}
    v_add_u32 v{vV}, 128, v{vV}
    s_sub_u32 s30, s30, 1
    s_cmp_lg_u32 s30, 0
    s_cbranch_scc1 L_attn_loop
    v_mfma_f32_32x32x16_bf16 {vr(OB,16)}, {vr(VF[1]+4,4)}, {vr(PB+4,4)}, {vr(OB,16)}
    """)
    stamp(k, 2)
    k(f"""
    s_waitcnt lgkmcnt(0)
    s_nop 15
    s_mul_i32 s26, s21, 4608
    s_add_u32 s26, s26, {CBASE}
    v_add_u32 v60, s26, v{vL16}
    v_lshrrev_b32 v61, 2, v{vL16}
    v_add_u32 v61, s26, v61
    v_mov_b32 v62, {FLAG}
    s_cmp_eq_u32 s22, 0
    s_cbranch_scc1 L_attn_lo
    ds_write_b128 v60, {vr(OA,4)}
    ds_write_b128 v60, {vr(OA+4,4)} offset:1024
    ds_write_b32 v61, v{OA+8} offset:2048
    ds_write_b128 v60, {vr(OB,4)} offset:2304
    ds_write_b128 v60, {vr(OB+4,4)} offset:3328
    ds_write_b32 v61, v{OB+8} offset:4352
    s_waitcnt lgkmcnt(0)
    s_barrier
    s_branch L_attn_join
    """)
    k.label("L_attn_lo")
    k(f"""
    s_barrier
    ds_read_b128 {vr(SA,4)}, v60
    ds_read_b128 {vr(SA+4,4)}, v60 offset:1024
    ds_read_b32 v{SA+8}, v61 offset:2048
    ds_read_b128 {vr(SB,4)}, v60 offset:2304
    ds_read_b128 {vr(SB+4,4)}, v60 offset:3328
    ds_read_b32 v{SB+8}, v61 offset:4352
    s_waitcnt lgkmcnt(0)
    """)
    for i in range(9): k(f"v_add_f32 v{OA+i}, v{OA+i}, v{SA+i}\nv_add_f32 v{OB+i}, v{OB+i}, v{SB+i}")
    k(f"""
    v_mov_b32 v58, v{OA+8}
    v_mov_b32 v59, v{OB+8}
    s_mov_b32 s26, 0x1f800000         ; 2^-64
    s_mov_b32 s27, 0x5f800000         ; 2^64
    v_permlane32_swap_b32 v{OA+8}, v58
    v_permlane32_swap_b32 v{OB+8}, v59
    s_nop 1
    v_cmp_nle_f32 s[54:55], s26, v{OA+8}
    v_cmp_nle_f32 s[56:57], s26, v{OB+8}
    v_cmp_nge_f32 vcc, s27, v{OA+8}
    s_or_b64 s[54:55], s[54:55], s[56:57]
    s_or_b64 s[54:55], s[54:55], vcc
    v_cmp_nge_f32 vcc, s27, v{OB+8}
    v_mov_b32 v63, 1
    s_or_b64 s[54:55], s[54:55], vcc
    s_cmp_eq_u64 s[54:55], 0
    s_cbranch_scc1 L_attn_join
    ds_write_b32 v62, v63
    s_waitcnt lgkmcnt(0)
    """)
    k.label("L_attn_join")
    k(f"""
    s_barrier
    ds_read_b32 v63, v62
    s_waitcnt lgkmcnt(0)
    v_readfirstlane_b32 s26, v63
    s_cmp_lg_u32 s53, 0
    s_cselect_b32 s26, 0, s26
    s_cmp_lg_u32 s26, 0
    s_cbranch_scc1 L_attn_slow
    """)
    stamp_out(k, 3, "s[8:11]", 8, base=0x1100000)
    k(f"""
    s_cmp_lg_u32 s22, 0
    s_cbranch_scc1 L_attn_end
    v_rcp_f32 v58, v{OA+8}
    v_rcp_f32 v59, v{OB+8}
    s_nop 0
    """)
    for i in range(8): k(f"v_mul_f32 v{OA+i}, v{OA+i}, v58\nv_mul_f32 v{OB+i}, v{OB+i}, v59")
    for i in range(4): k(f"v_cvt_pk_bf16_f32 v{PA+i}, v{OA+2*i}, v{OA+2*i+1}\nv_cvt_pk_bf16_f32 v{PB+i}, v{OB+2*i}, v{OB+2*i+1}")
    k(f"""
    v_and_b32 v6, 31, v0
    v_lshlrev_b32 v6, 5, v6
    v_lshl_or_b32 v6, v7, 3, v6       ; row*32 + 8h
    s_add_u32 s24, s24, {WS_O}
    buffer_store_dwordx2 {vr(PA,2)}, v6, s[8:11], s24 offen
    buffer_store_dwordx2 {vr(PA+2,2)}, v6, s[8:11], s24 offen offset:16
    buffer_store_dwordx2 {vr(PB,2)}, v6, s[8:11], s24 offen offset:1024
    buffer_store_dwordx2 {vr(PB+2,2)}, v6, s[8:11], s24 offen offset:1040
    s_branch L_attn_end
    """)
    k.label("L_attn_slow")
    k(f"""
    s_mov_b32 s53, 1
    s_lshl_b32 s26, s22, 15
    v_add_u32 v{vK}, s26, v{vL16}
    v_mov_b32 v4, 0xff800000
    v_mov_b32 v5, 0xff800000
    s_mov_b32 s30, 32
    """)
    k.label("L_attn_mloop")
    k(f"""
    ds_read_b128 {vr(KF[0],4)}, v{vK}
    v_add_u32 v{vK}, 1024, v{vK}
    s_waitcnt lgkmcnt(0)
    v_mfma_f32_32x32x16_bf16 {vr(SA,16)}, {vr(KF[0],4)}, {vr(QA,4)}, 0
    v_mfma_f32_32x32x16_bf16 {vr(SB,16)}, {vr(KF[0],4)}, {vr(QB,4)}, 0
    s_nop 15
    s_nop 7
    """)
    for i in range(8): k(f"v_max3_f32 v4, v4, v{SA+2*i}, v{SA+2*i+1}\nv_max3_f32 v5, v5, v{SB+2*i}, v{SB+2*i+1}")
    k(f"""
    s_sub_u32 s30, s30, 1
    s_cmp_lg_u32 s30, 0
    s_cbranch_scc1 L_attn_mloop
    v_mov_b32 v58, v4
    v_mov_b32 v59, v5
    s_nop 1
    v_permlane32_swap_b32 v4, v58
    v_permlane32_swap_b32 v5, v59
    s_nop 1
    v_max_f32 v4, v4, v58
    v_max_f32 v5, v5, v59
    s_lshl_b32 s26, s22, 9            ; kh*512
    v_add_u32 v58, s26, v61
    s_sub_u32 s27, 512, s26
    v_add_u32 v59, s27, v61
    ds_write_b32 v58, v4
    ds_write_b32 v58, v5 offset:256
    s_waitcnt lgkmcnt(0)
    s_barrier
    ds_read_b32 v56, v59
    ds_read_b32 v57, v59 offset:256
    s_waitcnt lgkmcnt(0)
    v_max_f32 v4, v4, v56
    v_max_f32 v5, v5, v57
    s_barrier
    s_branch L_attn_pass
    """)
    k.label("L_attn_end")
    k("s_endpgm")
    return k

QSCALE = 0.25 * 1.4426950408889634
def fhex(x):
    import struct
    return "0x%08x" % struct.unpack("<I", struct.pack("<f", x))[0]

def lane_consts(k):
    k("""
    v_and_b32 v4, 63, v0
    v_lshrrev_b32 v6, 6, v0
    v_and_b32 v5, 31, v0
    v_readfirstlane_b32 s20, v6
    v_bfe_u32 v7, v0, 5, 1
    """)

def tr_addr(k, vdst, rw_shift, swz_mode):
    k(f"""
    v_bfe_u32 v10, v0, 2, 2           ; i>>2
    v_lshl_add_u32 v11, v7, 3, v10    ; row = 8h + (i>>2)
    v_lshlrev_b32 v11, {rw_shift}, v11
    v_bfe_u32 v12, v0, 4, 1           ; g&1
    v_bfe_u32 v13, v0, 1, 1           ; (i&3)>>1
    v_lshl_add_u32 v12, v12, 1, v13   ; chunk
    """)
    if swz_mode == 'r128':
        k("v_bfe_u32 v13, v0, 3, 1\nv_lshlrev_b32 v13, 2, v13\nv_xor_b32 v12, v12, v13")
    elif swz_mode == 'r256':
        k("v_lshlrev_b32 v13, 2, v10\nv_xor_b32 v12, v12, v13")
    k(f"""
    v_lshl_add_u32 v11, v12, 4, v11
    v_and_b32 v13, 1, v0
    v_lshl_add_u32 v{vdst}, v13, 3, v11
    """)

class G:
    pass

def log2(x):
    r = x.bit_length() - 1
    assert 1 << r == x
    return r

def gemm_setup(k, c):
    NW = c.WM * c.WN
    c.RX = c.KC * 2; c.LX = c.RX // 16; c.RPI = 64 // c.LX
    c.RW = c.BN * 2; c.CW = c.RW // 16; c.RPW = 64 // c.CW
    c.BM = c.WM * c.MT * 32
    c.NXI = c.BM * c.RX // 1024; c.NWI = c.KC * c.RW // 1024
    assert c.NXI % NW == 0 and c.NWI % NW == 0, (c.NXI, c.NWI)
    c.XB = c.BM * c.RX; c.WB = c.KC * c.RW
    c.SB = c.XB + c.NMAT * c.WB
    c.KS = c.KC // 16; c.NST = c.K // c.KC
    c.DPS = (c.NXI + c.NMAT * c.NWI) // NW
    lw = log2(c.WM)
    k(f"s_and_b32 s23, s20, {c.WM-1}\ns_lshr_b32 s24, s20, {lw}")
    llx = log2(c.LX)
    k(f"v_lshrrev_b32 v10, {llx}, v4\nv_and_b32 v11, {c.LX-1}, v4\nv_lshrrev_b32 v12, 4, v4")
    if c.LX == 16:
        k("s_lshl_b32 s25, s20, 2\nv_add_u32 v12, s25, v12\nv_and_b32 v12, 15, v12")
    else:
        assert c.LX == 8
        k("s_lshl_b32 s25, s20, 2\nv_add_u32 v12, s25, v12\nv_and_b32 v12, 7, v12")
    k(f"v_xor_b32 v11, v11, v12\ns_mov_b32 s25, {c.ldx}\nv_mul_lo_u32 v10, v10, s25\nv_lshl_add_u32 v{c.vDX}, v11, 4, v10")
    lcw = log2(c.CW)
    k(f"v_lshrrev_b32 v10, {lcw}, v4\nv_and_b32 v11, {c.CW-1}, v4")
    if c.RW == 128: k("v_bfe_u32 v12, v4, 4, 1\nv_lshlrev_b32 v12, 2, v12\nv_xor_b32 v11, v11, v12")
    elif c.RW == 256: k("v_bfe_u32 v12, v4, 4, 2\nv_lshlrev_b32 v12, 2, v12\nv_xor_b32 v11, v11, v12")
    else: assert False
    k(f"s_mov_b32 s25, {c.ldw}\nv_mul_lo_u32 v10, v10, s25\nv_lshl_add_u32 v{c.vDW}, v11, 4, v10")
    k(f"""
    s_mul_i32 s25, s20, {c.RPI}
    s_add_u32 s25, s25, s21
    s_mul_i32 s26, s25, {c.ldx}
    s_add_u32 s26, s26, {c.xbase}
    s_mul_i32 s27, s20, {c.RPW * c.ldw}
    s_lshl_b32 s25, s22, 1
    s_add_u32 s27, s27, s25
    s_lshl_b32 s28, s20, 10
    """)
    gemm_prologue(k, c)
    if c.LX == 16: k("v_and_b32 v10, 15, v5")
    else: k("v_bfe_u32 v10, v5, 1, 3")
    k(f"""
    v_xor_b32 v10, v10, v7
    v_lshlrev_b32 v10, 4, v10
    v_lshl_add_u32 v10, v5, {log2(c.RX)}, v10
    s_mul_i32 s25, s23, {c.MT * 32 * c.RX}
    """)
    for ks in range(c.KS):
        k(f"v_xor_b32 v{c.vXb+ks}, {32*ks}, v10\nv_add_u32 v{c.vXb+ks}, s25, v{c.vXb+ks}")
    tr_addr(k, 14, log2(c.RW), 'r128' if c.RW == 128 else 'r256')
    for nt in range(c.NT):
        k(f"s_mul_i32 s25, s24, {c.NT}\ns_add_u32 s25, s25, {nt}\ns_lshl_b32 s25, s25, 6\nv_xor_b32 v{c.vWb+nt}, s25, v14\nv_add_u32 v{c.vWb+nt}, {c.XB}, v{c.vWb+nt}")

def gemm_dma_list(c):
    NW = c.WM * c.WN
    out = []
    for j in range(c.NXI // NW):
        out.append(f"""
        s_add_u32 s38, s29, {j*NW*1024}
        s_mov_b32 m0, s38
        s_add_u32 s39, s26, {j*NW*c.RPI*c.ldx}
        buffer_load_dwordx4 v{c.vDX}, {c.xsrd}, s39 offen lds
        """)
    for mat in range(c.NMAT):
        for j in range(c.NWI // NW):
            out.append(f"""
            s_add_u32 s38, s29, {c.XB + mat*c.WB + j*NW*1024}
            s_mov_b32 m0, s38
            s_add_u32 s39, s27, {j*NW*c.RPW*c.ldw}
            buffer_load_dwordx4 v{c.vDW}, {c.wsrd[mat]}, s39 offen lds
            """)
    return out

def gemm_adv(k, c):
    k(f"""
    s_add_u32 s26, s26, {c.KC*2}
    s_add_u32 s27, s27, {c.KC*c.ldw}
    s_add_u32 s29, s29, {c.SB}
    s_cmp_ge_u32 s29, s30
    s_cselect_b32 s29, s28, s29
    """)

def gemm_prologue(k, c, npre=None):
    k(f"s_mov_b32 s29, s28\ns_add_u32 s30, s28, {c.R*c.SB}\ns_mov_b32 s46, {c.R-1}")
    lab = f"L_{k.name}_pre{getattr(c,'tag','')}"
    k.label(lab)
    for a in gemm_dma_list(c): k(a)
    gemm_adv(k, c)
    k(f"s_sub_u32 s46, s46, 1\ns_cmp_lg_u32 s46, 0\ns_cbranch_scc1 {lab}")

def gemm_main(k, c, kstep_hook=None):
    NST, R = c.NST, c.R
    nfr = c.MT + 2 * c.NMAT * c.NT
    stag = getattr(c, 'STAG', False)
    stamp(k, 1)
    nf = 4 * (c.MT + c.NMAT * c.NT)
    for i in range(nf): k(f"v_mov_b32 v{c.FR[(c.KS-1) % 2]+i}, 0")
    k(f"s_mov_b32 s47, 0\ns_mov_b32 s46, {NST - R + 1}")
    def mfmas(ks):
        b = c.FR[ks % 2]
        for mat in range(c.NMAT):
            for nt in range(c.NT):
                wf = b + 4*c.MT + 4*(mat*c.NT + nt)
                for mt in range(c.MT):
                    a = c.ACC + 16 * ((mat*c.NT + nt) * c.MT + mt)
                    k(f"v_mfma_f32_32x32x16_bf16 {vr(a,16)}, {vr(wf,4)}, {vr(b+4*mt,4)}, {vr(a,16)}")
        if kstep_hook: kstep_hook(b)
    def rd(ks):
        b = c.FR[ks % 2]
        for mt in range(c.MT):
            k(f"ds_read_b128 {vr(b+4*mt,4)}, v{c.vXa+ks} offset:{mt*32*c.RX}")
        b += 4 * c.MT
        for mat in range(c.NMAT):
            for nt in range(c.NT):
                for t in range(2):
                    k(f"ds_read_b64_tr_b16 {vr(b+2*t,2)}, v{c.vWa+nt} offset:{mat*c.WB + ks*16*c.RW + t*4*c.RW}")
                b += 4
    def stage(dma, nwait, tag):
        for ks in range(c.KS): k(f"v_add_u32 v{c.vXa+ks}, s47, v{c.vXb+ks}")
        for nt in range(c.NT): k(f"v_add_u32 v{c.vWa+nt}, s47, v{c.vWb+nt}")
        k(f"s_add_u32 s47, s47, {c.SB}\ns_cmp_ge_u32 s47, {R*c.SB}\ns_cselect_b32 s47, 0, s47")
        k(f"s_waitcnt vmcnt({nwait}) lgkmcnt(0)\ns_barrier")
        D = gemm_dma_list(c) if dma else []
        nslots = c.KS
        sl = [0]
        def dma_slot():
            i = sl[0]; sl[0] += 1
            if not D: return
            if stag:
                h0 = nslots // 2
                g = 0 if i < h0 else 1
                j = i if g == 0 else i - h0
                per = (len(D) + h0 - 1) // h0
                part = D[j*per:(j+1)*per]
                if part:
                    lab = f"L_{k.name}_sg_{tag}_{i}"
                    k(f"s_cmp_lg_u32 s33, {g}\ns_cbranch_scc1 {lab}")
                    for a in part: k(a)
                    k.label(lab)
            else:
                per = (len(D) + nslots - 1) // nslots
                for a in D[i*per:(i+1)*per]: k(a)
        rd(0)
        mfmas(c.KS - 1); dma_slot()
        for ks in range(c.KS - 1):
            rd(ks + 1); k(f"s_waitcnt lgkmcnt({nfr})")
            mfmas(ks); dma_slot()
        if dma: gemm_adv(k, c)
    lab = f"L_{k.name}_main"
    k.label(lab)
    stage(True, (R - 2) * c.DPS, "m")
    k(f"s_sub_u32 s46, s46, 1\ns_cmp_lg_u32 s46, 0\ns_cbranch_scc1 {lab}")
    for d in range(R - 1):
        stage(False, (R - 2 - d) * c.DPS, f"d{d}")
    k("s_waitcnt lgkmcnt(0)")
    mfmas(c.KS - 1)
    k("s_nop 15")
    stamp(k, 11)

def half_sum(k, regs, tmps):
    for r, t in zip(regs, tmps): k(f"v_mov_b32 v{t}, v{r}")
    k("s_nop 1")
    for r, t in zip(regs, tmps): k(f"v_permlane32_swap_b32 v{r}, v{t}")
    k("s_nop 1")
    for r, t in zip(regs, tmps): k(f"v_add_f32 v{r}, v{r}, v{t}")

def colsum_part(k, L, XF):
    srd(k, 40, 32, 1835008); srd(k, 44, 34, 1835008)
    k(f"""
    s_lshl_b32 s38, s2, 2
    s_add_u32 s38, s38, s20           ; W
    s_cmp_ge_u32 s38, 896
    s_cbranch_scc1 L_{L}_end
    s_cmp_ge_u32 s38, 448
    s_cselect_b32 s39, 448, 0
    s_cselect_b32 s48, 1792, 0
    s_cselect_b32 s40, s44, s40
    s_cselect_b32 s41, s45, s41
    s_sub_u32 s38, s38, s39           ; rem
    s_mul_i32 s39, s38, 9363
    s_lshr_b32 s39, s39, 16           ; rc
    s_mul_i32 s49, s39, 7
    s_sub_u32 s49, s38, s49           ; cb
    s_mul_i32 s50, s39, {8*3584}
    s_lshl_b32 s51, s49, 9
    s_add_u32 s50, s50, s51
    v_lshlrev_b32 v10, 3, v4
    """)
    for r in range(8):
        k(f"buffer_load_dwordx2 {vr(XF+2*r,2)}, v10, s[40:43], s50 offen")
        if r < 7: k(f"s_add_u32 s50, s50, 3584")
    k(f"""
    v_mov_b32 v12, 0x00003f80
    v_mov_b32 v13, 0x3f800000
    v_mov_b32 v16, 0
    v_mov_b32 v17, 0
    v_mov_b32 v18, 0
    v_mov_b32 v19, 0
    s_waitcnt vmcnt(0)
    """)
    for r in range(8):
        k(f"""
        v_dot2_f32_bf16 v16, v{XF+2*r}, v12, v16
        v_dot2_f32_bf16 v17, v{XF+2*r}, v13, v17
        v_dot2_f32_bf16 v18, v{XF+2*r+1}, v12, v18
        v_dot2_f32_bf16 v19, v{XF+2*r+1}, v13, v19
        """)
    k(f"""
    s_lshl_b32 s51, s49, 8
    s_add_u32 s51, s51, s48
    s_lshl_b32 s51, s51, 2
    s_add_u32 s51, s51, {WS_CS}
    v_lshlrev_b32 v10, 4, v4
    s_nop 2
    buffer_atomic_add_f32 v16, v10, s[16:19], s51 offen
    buffer_atomic_add_f32 v17, v10, s[16:19], s51 offen offset:4
    buffer_atomic_add_f32 v18, v10, s[16:19], s51 offen offset:8
    buffer_atomic_add_f32 v19, v10, s[16:19], s51 offen offset:12
    """)

def cfg64(K, KC, R, ldx, xbase, xsrd, ldw):
    c = G()
    c.WM, c.WN, c.MT, c.NT, c.NMAT, c.BN = 2, 2, 1, 1, 1, 64
    c.K, c.KC, c.R, c.ldx, c.xbase, c.xsrd, c.ldw, c.wsrd = K, KC, R, ldx, xbase, xsrd, ldw, ["s[12:15]"]
    c.vDX, c.vDW = 1, 2
    c.vXb, c.vXa, c.vWb, c.vWa = 16, 24, 32, 33
    c.FR = [36, 44]
    c.ACC = 64
    c.NPRE = int(__import__('os').environ.get('NPRE', '1'))
    return c

def map64(k):
    k("""
    s_and_b32 s21, s2, 7
    s_lshl_b32 s21, s21, 2
    s_lshr_b32 s22, s2, 6
    s_add_u32 s21, s21, s22
    s_lshl_b32 s21, s21, 6
    s_bfe_u32 s22, s2, 0x30003
    s_lshl_b32 s22, s22, 6
    """)

def gen_res(kind, KC=128, R=4):
    k3 = kind == 'k3'
    name = "wo_kernel" if k3 else "down_kernel"
    L = name
    if k3: c = cfg64(512, KC, R, 1024, WS_O, "s[16:19]", 1024)
    else: c = cfg64(1792, KC, R, 3584, WS_ACT, "s[16:19]", 1024)
    SB = 64 * KC * 2 * 2
    k = Kern(name, (256, 1, 1), (256, 1, 1), SB * R, 112)
    RES = 80; ACC = c.ACC; vSum, vSq, ONES = 8, 9, 15
    k(f"s_cmp_ge_u32 s2, 256\ns_cbranch_scc1 L_{L}_end")
    if k3:
        k("s_load_dwordx2 s[4:5], s[0:1], 0\ns_load_dwordx2 s[6:7], s[0:1], 32\ns_load_dwordx4 s[32:35], s[0:1], 48\ns_load_dwordx2 s[36:37], s[0:1], 88")
    else:
        k("s_load_dwordx4 s[4:7], s[0:1], 64\ns_load_dwordx2 s[36:37], s[0:1], 88")
    stamp(k, 0)
    lane_consts(k)
    map64(k)
    k("s_waitcnt lgkmcnt(0)")
    if k3:
        srd(k, 8, 4, 2097152); srd(k, 12, 6, 524288)
    else:
        srd(k, 12, 4, 1835008); srd(k, 8, 6, 2097152)
    srd(k, 16, 36, WS_SIZE)
    k(f"""
    s_lshl_b32 s31, s21, 10
    s_lshl_b32 s25, s22, 1
    s_add_u32 s31, s31, s25
    v_lshrrev_b32 v3, 3, v0
    v_and_b32 v6, 7, v0
    v_lshlrev_b32 v3, 10, v3
    v_lshl_add_u32 v3, v6, 4, v3
    """)
    if k3:
        k(f"s_add_u32 s25, s31, 32768\nbuffer_load_dwordx4 {vr(RES,4)}, v3, s[8:11], s31 offen\nbuffer_load_dwordx4 {vr(RES+4,4)}, v3, s[8:11], s25 offen")
    else:
        k(f"s_add_u32 s25, s31, {WS_H}\nbuffer_load_dwordx4 {vr(RES,4)}, v3, s[16:19], s25 offen")
        k(f"s_add_u32 s25, s31, {WS_H+32768}\nbuffer_load_dwordx4 {vr(RES+4,4)}, v3, s[16:19], s25 offen")
    gemm_setup(k, c)
    for i in range(16): k(f"v_mov_b32 v{ACC+i}, 0")
    gemm_main(k, c)
    RS = 272
    k(f"""
    s_lshl_b32 s25, s23, 5
    v_add_u32 v10, s25, v5
    s_movk_i32 s25, {RS}
    v_mul_lo_u32 v10, v10, s25
    v_lshl_add_u32 v10, v7, 4, v10
    s_lshl_b32 s25, s24, 7
    v_add_u32 v10, s25, v10
    """)
    for g in range(4): k(f"ds_write_b128 v10, {vr(ACC+4*g,4)} offset:{32*g}")
    k(f"""
    v_lshrrev_b32 v10, 3, v0
    s_movk_i32 s25, {RS}
    v_mul_lo_u32 v10, v10, s25
    v_lshl_add_u32 v10, v6, 5, v10
    s_waitcnt lgkmcnt(0)
    s_barrier
    """)
    for p in range(2):
        k(f"ds_read_b128 {vr(ACC+8*p,4)}, v10 offset:{p*32*RS}\nds_read_b128 {vr(ACC+8*p+4,4)}, v10 offset:{p*32*RS+16}")
    k("s_waitcnt vmcnt(0) lgkmcnt(0)")
    for r in range(8):
        k(f"v_lshlrev_b32 v12, 16, v{RES+r}\nv_and_b32 v13, 0xffff0000, v{RES+r}")
        k(f"v_add_f32 v{ACC+2*r}, v{ACC+2*r}, v12\nv_add_f32 v{ACC+2*r+1}, v{ACC+2*r+1}, v13")
    for r in range(8): k(f"v_cvt_pk_bf16_f32 v{ACC+r}, v{ACC+2*r}, v{ACC+2*r+1}")
    if k3:
        k(f"s_add_u32 s25, s31, {WS_H}\nbuffer_store_dwordx4 {vr(ACC,4)}, v3, s[16:19], s25 offen")
        k(f"s_add_u32 s25, s31, {WS_H+32768}\nbuffer_store_dwordx4 {vr(ACC+4,4)}, v3, s[16:19], s25 offen")
        S = RES
        for i in range(4): k(f"v_mov_b32 v{S+i}, 0")
        k(f"v_mov_b32 v{ONES}, 0x3f803f80")
        for r in range(4):
            for p in range(2):
                k(f"v_dot2_f32_bf16 v{S+2*p}, v{ACC+4*p+r}, v{ONES}, v{S+2*p}\nv_dot2_f32_bf16 v{S+2*p+1}, v{ACC+4*p+r}, v{ACC+4*p+r}, v{S+2*p+1}")
        k("s_nop 2")
        for dpp in ("quad_perm:[1,0,3,2]", "quad_perm:[2,3,0,1]", "row_half_mirror"):
            for i in range(4): k(f"v_add_f32_dpp v{S+i}, v{S+i}, v{S+i} {dpp} row_mask:0xf bank_mask:0xf")
            k("s_nop 1")
        k(f"""
        v_lshrrev_b32 v10, 3, v0
        v_lshlrev_b32 v10, 3, v10         ; row*8
        s_lshl_b32 s38, s21, 3            ; row0*8
        s_lshl_b32 s39, s22, 8            ; cb*16384
        s_add_u32 s38, s38, s39
        s_add_u32 s38, s38, {WS_ST}
        buffer_store_dwordx2 {vr(S,2)}, v10, s[16:19], s38 offen
        buffer_store_dwordx2 {vr(S+2,2)}, v10, s[16:19], s38 offen offset:256
        """)
        stamp_out(k, 12, "s[16:19]", 4)
    else:
        k(f"buffer_store_dwordx4 {vr(ACC,4)}, v3, s[8:11], s31 offen")
        k(f"s_add_u32 s25, s31, 32768\nbuffer_store_dwordx4 {vr(ACC+4,4)}, v3, s[8:11], s25 offen")
        stamp_out(k, 12, "s[16:19]", 4)
    k.label(f"L_{L}_end")
    k("s_endpgm")
    return k

def gen_qkv(KC=64, R=5):
    name = "qkv_kernel"; L = name
    c = cfg64(512, KC, R, 1024, 0, "s[8:11]", 1024)
    k = Kern(name, (320, 1, 1), (256, 1, 1), 81920, 128)
    ACC = c.ACC; ACC1 = 80; ONES = 96; vS = 100
    k(f"s_cmp_ge_u32 s2, 320\ns_cbranch_scc1 L_{L}_end")
    k("s_load_dwordx4 s[4:7], s[0:1], 0\ns_load_dwordx4 s[32:35], s[0:1], 16\ns_load_dwordx2 s[36:37], s[0:1], 88")
    stamp(k, 0)
    lane_consts(k)
    k("s_waitcnt lgkmcnt(0)")
    srd(k, 8, 4, 2097152); srd(k, 12, 6, 524288); srd(k, 16, 36, WS_SIZE)
    for i in range(16): k(f"v_mov_b32 v{ACC+i}, 0\nv_mov_b32 v{ACC1+i}, 0")
    for i in range(4): k(f"v_mov_b32 v{ONES+i}, 0x3f803f80")
    for i in range(8): k(f"v_mov_b32 v{vS+i}, 0")
    def hook(b):
        k(f"v_mfma_f32_32x32x16_bf16 {vr(ACC1,16)}, {vr(b+4,4)}, {vr(ONES,4)}, {vr(ACC1,16)}")
        U = 108
        for r in range(4):
            k(f"v_lshlrev_b32 v{U+2*r}, 16, v{b+r}\nv_and_b32 v{U+2*r+1}, 0xffff0000, v{b+r}")
        for r in range(4):
            a = vS + 2 * (r & 1)
            k(f"v_pk_add_f32 {vr(a,2)}, {vr(a,2)}, {vr(U+2*r,2)}")
            k(f"v_pk_fma_f32 {vr(a+4,2)}, {vr(U+2*r,2)}, {vr(U+2*r,2)}, {vr(a+4,2)}")
    def ln_stats(scale):
        k(f"""
        v_add_f32 v{vS}, v{vS}, v{vS+1}
        v_add_f32 v{vS+2}, v{vS+2}, v{vS+3}
        v_add_f32 v{vS+4}, v{vS+4}, v{vS+5}
        v_add_f32 v{vS+6}, v{vS+6}, v{vS+7}
        v_add_f32 v{vS}, v{vS}, v{vS+2}
        v_add_f32 v{vS+1}, v{vS+4}, v{vS+6}
        """)
        half_sum(k, [vS, vS+1], [12, 13])
        k(f"""
        v_mul_f32 v12, {fhex(-1.0/512)}, v{vS}
        v_mul_f32 v13, {fhex(1.0/512)}, v{vS+1}
        v_fma_f32 v13, -v12, v12, v13
        v_max_f32 v13, 0, v13
        v_add_f32 v13, {fhex(1e-5)}, v13
        v_rsq_f32 v13, v13
        s_nop 0
        v_mul_f32 v13, {fhex(scale)}, v13
        """)
        for r in range(16):
            k(f"v_fma_f32 v{ACC+r}, v12, v{ACC1+r}, v{ACC+r}\nv_mul_f32 v{ACC+r}, v{ACC+r}, v13")
        for r in range(8): k(f"v_cvt_pk_bf16_f32 v{ACC+r}, v{ACC+2*r}, v{ACC+2*r+1}")
    k(f"s_cmp_lt_u32 s2, 64\ns_cbranch_scc1 L_{L}_kv\ns_sub_u32 s2, s2, 64")
    map64(k)
    gemm_setup(k, c)
    k("s_or_b32 s45, s21, s23")
    cnt = [0]
    def hookq(b):
        cnt[0] += 1
        lab = f"L_{L}_cs{cnt[0]}"
        k(f"s_cmp_lg_u32 s45, 0\ns_cbranch_scc1 {lab}")
        k(f"v_mfma_f32_32x32x16_bf16 {vr(ACC1,16)}, {vr(b+4,4)}, {vr(ONES,4)}, {vr(ACC1,16)}")
        k.label(lab)
    gemm_main(k, c, kstep_hook=hookq)
    RS = 272
    k(f"""
    s_lshl_b32 s25, s23, 5
    v_add_u32 v10, s25, v5
    s_movk_i32 s25, {RS}
    v_mul_lo_u32 v10, v10, s25
    v_lshl_add_u32 v10, v7, 4, v10
    s_lshl_b32 s25, s24, 7
    v_add_u32 v10, s25, v10
    """)
    for g in range(4): k(f"ds_write_b128 v10, {vr(ACC+4*g,4)} offset:{32*g}")
    k(f"""
    v_lshrrev_b32 v3, 4, v0
    v_and_b32 v6, 15, v0
    s_movk_i32 s25, {RS}
    v_mul_lo_u32 v10, v3, s25
    v_lshl_add_u32 v10, v6, 4, v10
    v_lshlrev_b32 v3, 11, v3
    v_lshl_add_u32 v3, v6, 4, v3
    s_lshl_b32 s31, s21, 11
    s_lshl_b32 s25, s22, 2
    s_add_u32 s31, s31, s25
    s_add_u32 s31, s31, {WS_G}
    s_waitcnt lgkmcnt(0)
    s_barrier
    """)
    for p in range(4): k(f"ds_read_b128 {vr(ACC+4*p,4)}, v10 offset:{p*16*RS}")
    for p in range(4):
        k(f"s_waitcnt lgkmcnt({3-p})\nbuffer_store_dwordx4 {vr(ACC+4*p,4)}, v3, s[16:19], s31 offen")
        if p < 3: k("s_add_u32 s31, s31, 32768")
    stamp_out(k, 12, "s[16:19]", 4)
    k(f"""
    s_cmp_lg_u32 s45, 0
    s_cbranch_scc1 L_{L}_end
    v_lshlrev_b32 v3, 4, v7
    s_lshl_b32 s25, s24, 5
    s_add_u32 s25, s25, s22
    s_lshl_b32 s25, s25, 2
    s_add_u32 s25, s25, {WS_CSQ}
    """)
    for g in range(4): k(f"buffer_store_dwordx4 {vr(ACC1+4*g,4)}, v3, s[16:19], s25 offen offset:{32*g}")
    k(f"s_branch L_{L}_end")
    k.label(f"L_{L}_kv")
    srd(k, 40, 32, 16384); srd(k, 44, 34, 16384)
    XB = 32768; VO = 16384 + 128
    vDX, vDW, vXb, vWb = 1, 2, 16, 32
    k(f"""
    s_lshl_b32 s21, s2, 5
    s_add_u32 s2, s2, 256
    v_lshlrev_b32 v{vDW}, 4, v4
    s_lshl_b32 s25, s20, 3
    s_add_u32 s26, s25, s21
    s_lshl_b32 s26, s26, 10
    s_lshl_b32 s28, s20, 13
    s_lshl_b32 s29, s20, 12
    s_and_b32 s25, s25, 8             ; (8w)&15
    """)
    for j in range(8):
        k(f"""
        s_add_u32 s38, s25, {j}
        s_lshl_b32 s38, s38, 4
        v_xor_b32 v{vDX}, s38, v{vDW}
        s_add_u32 s38, s28, {j*1024}
        s_mov_b32 m0, s38
        s_add_u32 s39, s26, {j*1024}
        buffer_load_dwordx4 v{vDX}, s[8:11], s39 offen lds
        """)
    for j in range(4):
        k(f"""
        s_add_u32 s39, s29, {j*1024}
        s_add_u32 s38, s39, {XB}
        s_mov_b32 m0, s38
        s_nop 0
        buffer_load_dwordx4 v{vDW}, s[40:43], s39 offen lds
        s_add_u32 s38, s39, {XB+VO}
        s_mov_b32 m0, s38
        s_nop 0
        buffer_load_dwordx4 v{vDW}, s[44:47], s39 offen lds
        """)
    k(f"""
    v_and_b32 v10, 15, v5
    v_xor_b32 v10, v10, v7
    v_lshlrev_b32 v10, 4, v10
    v_lshl_add_u32 v10, v5, 10, v10
    s_lshl_b32 s25, s20, 8
    """)
    for ks in range(8): k(f"v_xor_b32 v{vXb+ks}, {32*ks}, v10\nv_add_u32 v{vXb+ks}, s25, v{vXb+ks}")
    k(f"""
    v_bfe_u32 v10, v0, 2, 2
    v_lshl_add_u32 v11, v7, 3, v10
    v_lshlrev_b32 v11, 5, v11         ; row*32
    v_and_b32 v12, 3, v0
    v_lshl_add_u32 v11, v12, 3, v11   ; + (i&3)*8
    v_bfe_u32 v12, v0, 4, 1
    s_movk_i32 s31, {VO}
    v_mad_u32_u24 v{vWb}, v12, s31, v11
    s_add_u32 s25, s29, {XB}
    v_add_u32 v{vWb}, s25, v{vWb}
    s_waitcnt vmcnt(0)
    s_barrier
    """)
    FR = c.FR
    def rd(ks):
        b = FR[ks % 2]
        k(f"ds_read_b128 {vr(b,4)}, v{vXb+ks}")
        k(f"ds_read_b64_tr_b16 {vr(b+4,2)}, v{vWb} offset:{ks*512}")
        k(f"ds_read_b64_tr_b16 {vr(b+6,2)}, v{vWb} offset:{ks*512+128}")
    rd(0)
    for ks in range(8):
        if ks < 7: rd(ks+1); k("s_waitcnt lgkmcnt(3)")
        else: k("s_waitcnt lgkmcnt(0)")
        b = FR[ks % 2]
        k(f"v_mfma_f32_32x32x16_bf16 {vr(ACC,16)}, {vr(b+4,4)}, {vr(b,4)}, {vr(ACC,16)}")
        hook(b)
    k(f"""
    s_nop 15
    s_barrier
    s_mul_i32 s25, s20, 10240
    v_add_u32 v10, s25, v{vDW}
    s_cmp_eq_u32 s20, 0
    s_cbranch_scc1 L_{L}_kvr
    """)
    blocks = [ACC + 4*i for i in range(4)] + [ACC1 + 4*i for i in range(4)] + [vS, vS + 4]
    for i, b in enumerate(blocks): k(f"ds_write_b128 v10, {vr(b,4)} offset:{i*1024}")
    k(f"s_waitcnt lgkmcnt(0)\ns_barrier\ns_branch L_{L}_end")
    k.label(f"L_{L}_kvr")
    k("s_barrier")
    T = 16
    for w in range(1, 4):
        for i, b in enumerate(blocks): k(f"ds_read_b128 {vr(T+4*i,4)}, v10 offset:{w*10240 + i*1024}")
        k("s_waitcnt lgkmcnt(0)")
        for i, b in enumerate(blocks):
            for r in range(4): k(f"v_add_f32 v{b+r}, v{b+r}, v{T+4*i+r}")
    ln_stats(1.0)
    vSq = vS
    k(f"""
    v_lshlrev_b32 v10, 3, v5
    s_lshl_b32 s38, s21, 3
    s_add_u32 s38, s38, {WS_XST}
    buffer_store_dwordx2 v[12:13], v10, s[16:19], s38 offen
    """)
    k(f"""
    s_mov_b32 s25, s21
    v_lshlrev_b32 v10, 4, v5
    v_lshl_add_u32 v10, v7, 3, v10
    s_lshl_b32 s38, s25, 5            ; tile*1024
    s_add_u32 s39, s38, {WS_K}
    buffer_store_dwordx2 {vr(ACC,2)}, v10, s[16:19], s39 offen
    buffer_store_dwordx2 {vr(ACC+2,2)}, v10, s[16:19], s39 offen offset:512
    v_mov_b32 v{vSq}, 0
    """)
    for r in range(4): k(f"v_dot2_f32_bf16 v{vSq}, v{ACC+r}, v{ACC+r}, v{vSq}")
    k(f"""
    v_and_b32 v11, 19, v5             ; 16i + (kk&3)
    v_bfe_u32 v12, v5, 2, 1
    v_lshl_add_u32 v11, v12, 3, v11
    v_bfe_u32 v12, v5, 3, 1
    v_lshl_add_u32 v11, v12, 2, v11   ; pos
    v_lshlrev_b32 v11, 1, v11
    v_lshl_add_u32 v11, v7, 14, v11   ; + 4h*4096
    s_lshl_b32 s38, s25, 1
    s_add_u32 s39, s38, {WS_VT}
    v_mov_b32 v31, v{vSq}
    """)
    for r in range(4):
        d0 = (r & 1) * 2 + (r >> 1) * 8
        k(f"s_add_u32 s38, s39, {d0*4096}")
        k(f"buffer_store_short v{ACC+4+r}, v11, s[16:19], s38 offen")
        k(f"s_add_u32 s38, s39, {(d0+1)*4096}")
        k(f"buffer_store_short_d16_hi v{ACC+4+r}, v11, s[16:19], s38 offen")
    k(f"""
    v_permlane32_swap_b32 v{vSq}, v31
    s_nop 1
    v_add_f32 v{vSq}, v{vSq}, v31
    s_nop 1
    v_max_f32_dpp v{vSq}, v{vSq}, v{vSq} quad_perm:[1,0,3,2] row_mask:0xf bank_mask:0xf
    s_nop 1
    v_max_f32_dpp v{vSq}, v{vSq}, v{vSq} quad_perm:[2,3,0,1] row_mask:0xf bank_mask:0xf
    s_nop 1
    v_max_f32_dpp v{vSq}, v{vSq}, v{vSq} row_ror:4 row_mask:0xf bank_mask:0xf
    s_nop 1
    v_max_f32_dpp v{vSq}, v{vSq}, v{vSq} row_ror:8 row_mask:0xf bank_mask:0xf
    s_nop 1
    v_mov_b32 v31, v{vSq}
    s_nop 1
    v_permlane16_swap_b32 v{vSq}, v31
    s_nop 1
    v_max_f32 v{vSq}, v{vSq}, v31
    s_lshr_b32 s38, s25, 3            ; tile*4
    s_add_u32 s38, s38, {WS_KN}
    v_mov_b32 v10, 0
    buffer_store_dword v{vSq}, v10, s[16:19], s38 offen
    """)
    stamp_out(k, 1, "s[16:19]", 4)
    k(f"""
    s_cmp_lg_u32 s25, 0
    s_cbranch_scc1 L_{L}_end
    v_mov_b32 v16, 0
    v_mov_b32 v17, 0
    v_mov_b32 v18, 0
    v_mov_b32 v19, 0
    s_mov_b32 s38, {WS_CS}
    """)
    for i in range(14):
        k(f"buffer_store_dwordx4 v[16:19], v{vDW}, s[16:19], s38 offen\ns_add_u32 s38, s38, 1024")
    k.label(f"L_{L}_end")
    k("s_endpgm")
    return k

def gen_ffn(KC=64, R=3):
    name = "ffn_kernel"; L = name
    c = G()
    c.WM, c.WN, c.MT, c.NT, c.NMAT, c.BN = 2, 4, 2, 1, 2, 128
    c.K, c.KC, c.R, c.ldx, c.xbase, c.xsrd, c.ldw, c.wsrd = 512, KC, R, 1024, WS_H, "s[16:19]", 3584, ["s[8:11]", "s[12:15]"]
    c.vDX, c.vDW = 1, 2
    c.vXb, c.vXa, c.vWb, c.vWa = 16, 24, 32, 33
    c.FR = [36, 52]
    c.ACC = 68 + 0
    c.ACC = 72
    c.NPRE = 1
    c.STAG = __import__('os').environ.get('STAG', '1') == '1'
    SB = 128 * KC * 2 + 2 * KC * 256
    k = Kern(name, (224, 1, 1), (512, 1, 1), SB * R + 9216, 192)
    ST = 136
    CS = 152
    k(f"s_cmp_ge_u32 s2, 224\ns_cbranch_scc1 L_{L}_end")
    k("s_load_dwordx4 s[4:7], s[0:1], 48\ns_load_dwordx2 s[36:37], s[0:1], 88")
    stamp(k, 0)
    lane_consts(k)
    k("s_waitcnt lgkmcnt(0)")
    srd(k, 8, 4, 1835008); srd(k, 12, 6, 1835008); srd(k, 16, 36, WS_SIZE)
    if FFNMAP == 0:
        k("s_and_b32 s21, s2, 7\ns_mul_i32 s21, s21, 28\ns_lshr_b32 s22, s2, 3\ns_add_u32 s21, s21, s22\ns_lshr_b32 s22, s21, 4\ns_and_b32 s21, s21, 15\ns_lshl_b32 s21, s21, 7\ns_lshl_b32 s22, s22, 7")
    else:
        k("s_and_b32 s21, s2, 7\ns_lshl_b32 s21, s21, 1\ns_lshr_b32 s22, s2, 3\ns_cmp_ge_u32 s22, 14\ns_cselect_b32 s25, 14, 0\ns_addc_u32 s21, s21, 0\ns_sub_u32 s22, s22, s25\ns_lshl_b32 s21, s21, 7\ns_lshl_b32 s22, s22, 7")
    AUX = SB * R
    PRM = 184
    k(f"""
    s_lshr_b32 s33, s20, 2
    v_lshlrev_b32 v3, 4, v4
    s_lshl_b32 s25, s20, 10
    s_add_u32 s38, s25, {AUX}
    s_mov_b32 m0, s38
    s_lshl_b32 s25, s20, 14
    s_lshl_b32 s39, s21, 3
    s_add_u32 s39, s39, s25
    s_add_u32 s39, s39, {WS_ST}
    buffer_load_dwordx4 v3, s[16:19], s39 offen lds
    v_lshlrev_b32 v3, 4, v5
    s_movk_i32 s25, 7168
    v_mad_u32_u24 v3, v7, s25, v3
    s_mov_b32 m0, {AUX + 8192}
    s_lshl_b32 s39, s22, 2
    s_add_u32 s39, s39, {WS_CS}
    buffer_load_dwordx4 v3, s[16:19], s39 offen lds
    """)
    gemm_setup(k, c)
    GA = -2.0 * 0.7978845608028654 * 1.4426950408889634
    k(f"""
    s_lshl_b32 s25, s23, 9            ; wm*64*8
    v_lshlrev_b32 v3, 3, v5
    v_lshl_add_u32 v3, v7, 12, v3     ; m*8 + 4h*1024
    v_add_u32 v3, s25, v3
    v_add_u32 v3, {AUX}, v3
    s_lshl_b32 s25, s24, 7            ; wn*32*4
    v_lshlrev_b32 v6, 4, v7
    v_add_u32 v6, s25, v6
    v_add_u32 v6, {AUX + 8192}, v6
    s_waitcnt vmcnt({(c.R - 1) * c.DPS})
    s_barrier
    """)
    for mt in range(2):
        for j in range(4): k(f"ds_read_b64 {vr(ST+8*mt+2*j,2)}, v3 offset:{j*1024 + mt*256}")
    for mat in range(2):
        for g in range(4): k(f"ds_read_b128 {vr(CS+16*mat+4*g,4)}, v6 offset:{mat*512 + 32*g}")
    k("s_waitcnt lgkmcnt(8)")
    for mt in range(2):
        b = ST + 8 * mt
        for j in range(1, 4): k(f"v_add_f32 v{b}, v{b}, v{b+2*j}\nv_add_f32 v{b+1}, v{b+1}, v{b+2*j+1}")
    half_sum(k, [ST, ST+1, ST+8, ST+9], [10, 11, 12, 13])
    k("s_waitcnt lgkmcnt(0)")
    for mt in range(2):
        b = ST + 8 * mt; P = PRM + 4 * mt
        k(f"""
        v_mul_f32 v12, {fhex(-1.0/512)}, v{b}
        v_mul_f32 v13, {fhex(1.0/512)}, v{b+1}
        v_fma_f32 v13, -v12, v12, v13
        v_max_f32 v13, 0, v13
        v_add_f32 v{P+2}, {fhex(1e-5)}, v13
        v_rsq_f32 v13, v{P+2}
        s_nop 0
        v_mul_f32 v{P}, {fhex(GA)}, v13
        v_mul_f32 v{P+1}, v13, v13
        v_mul_f32 v{P+1}, v{P+1}, v{P}
        v_mul_f32 v{P+1}, {fhex(0.044715)}, v{P+1}
        """)
        for r in range(16):
            k(f"v_mul_f32 v{c.ACC+16*mt+r}, v12, v{CS+r}\nv_mul_f32 v{c.ACC+32+16*mt+r}, v12, v{CS+16+r}")
    gemm_main(k, c)
    RS = 272
    assert c.NST % R == 2 and R == 3
    TB = 2 * SB
    k(f"""
    s_lshl_b32 s25, s23, 6
    v_add_u32 v10, s25, v5
    s_movk_i32 s25, {RS}
    v_mul_lo_u32 v10, v10, s25
    v_lshl_add_u32 v10, v7, 3, v10
    s_lshl_b32 s25, s24, 6
    s_add_u32 s25, s25, {TB}
    v_add_u32 v10, s25, v10
    """)
    for mt in range(2):
        P = PRM + 4 * mt
        g0 = c.ACC + 16 * mt; u0 = c.ACC + 32 + 16 * mt
        T = c.FR[0]
        for r0 in range(0, 16, 8):
            rr = range(r0, r0 + 8)
            for r in rr: k(f"v_mul_f32 v{T+r-r0}, v{g0+r}, v{g0+r}")
            for r in rr: k(f"v_mul_f32 v{u0+r}, v{u0+r}, v{g0+r}")
            for r in rr: k(f"v_fma_f32 v{T+r-r0}, v{T+r-r0}, v{P+1}, v{P}")
            for r in rr: k(f"v_mul_f32 v{T+r-r0}, v{T+r-r0}, v{g0+r}")
            for r in rr: k(f"v_exp_f32 v{T+r-r0}, v{T+r-r0}")
            for r in rr: k(f"v_fma_f32 v{T+r-r0}, v{T+r-r0}, v{P+2}, v{P+2}")
            for r in rr: k(f"v_rcp_f32 v{T+r-r0}, v{T+r-r0}")
            for r in rr: k(f"v_mul_f32 v{u0+r}, v{u0+r}, v{T+r-r0}")
        for r in range(8): k(f"v_cvt_pk_bf16_f32 v{u0+r}, v{u0+2*r}, v{u0+2*r+1}")
        for g in range(4): k(f"ds_write_b64 v10, {vr(u0+2*g,2)} offset:{mt*32*RS + 16*g}")
    k(f"""
    v_lshrrev_b32 v3, 4, v0
    v_and_b32 v6, 15, v0
    s_movk_i32 s25, {RS}
    v_mul_lo_u32 v10, v3, s25
    v_lshl_add_u32 v10, v6, 4, v10
    v_add_u32 v10, {TB}, v10
    s_movk_i32 s25, 3584
    v_mul_lo_u32 v3, v3, s25
    v_lshl_add_u32 v3, v6, 4, v3
    s_mul_i32 s31, s21, 3584
    s_lshl_b32 s25, s22, 1
    s_add_u32 s31, s31, s25
    s_add_u32 s31, s31, {WS_ACT}
    s_waitcnt lgkmcnt(0)
    s_barrier
    """)
    for p in range(4): k(f"ds_read_b128 {vr(c.ACC+4*p,4)}, v10 offset:{p*32*RS}")
    for p in range(4):
        k(f"s_waitcnt lgkmcnt({3-p})\nbuffer_store_dwordx4 {vr(c.ACC+4*p,4)}, v3, s[16:19], s31 offen")
        if p < 3: k(f"s_add_u32 s31, s31, {32*3584}")
    stamp_out(k, 12, "s[16:19]", 8)
    k.label(f"L_{L}_end")
    k("s_endpgm")
    return k

def emit(kerns, path):
    hdr = open(f"cdna_kernels/{NAME}.s.ref").read().split("; Override launch")[0]
    s = hdr
    for k in kerns:
        s += f"; @launch kernel={k.name} grid=({k.grid[0]},{k.grid[1]},{k.grid[2]}) block=({k.block[0]},{k.block[1]},{k.block[2]}) lds={k.lds}\n"
    s += '.amdgcn_target "amdgcn-amd-amdhsa--gfx950"\n.text\n'
    for k in kerns: s += k.text()
    s += '.section .rodata,"a"\n'
    for k in kerns: s += k.desc()
    open(path, "w").write(s)

if __name__ == "__main__":
    if len(sys.argv) > 1 and sys.argv[1] == "stamp":
        STAMP = True
        emit([gen_qkv(), gen_attn(), gen_res("k3"), gen_ffn(), gen_res("k5")], "full_stamp.s")
        sys.exit(0)
    E = __import__('os').environ
    emit([gen_qkv(), gen_attn(), gen_res("k3", int(E.get("K3KC", 128)), int(E.get("K3R", 4))), gen_ffn(), gen_res("k5", int(E.get("K5KC", 128)), int(E.get("K5R", 4)))], "full.s")
```
